```python
import torch

def _softmax(x, axis=-1):
    return torch.softmax(x, dim=axis)
def _gelu(x):
    return torch.nn.functional.gelu(x, approximate="tanh")
def _silu(x):
    return torch.nn.functional.silu(x)
def _sigmoid(x):
    return torch.sigmoid(x)
def _layernorm(x, axis=-1, eps=1e-5):
    m = x.mean(dim=axis, keepdim=True)
    v = x.var(dim=axis, keepdim=True, unbiased=False)
    return (x - m) / torch.sqrt(v + eps)
def _scatter_add(tgt, idx, src, axis=0):
    return tgt.clone().index_add_(axis, idx, src)
def _segment_sum(src, seg, n):
    out = torch.zeros((n,) + src.shape[1:], dtype=src.dtype)
    return out.index_add_(0, seg, src)
def _pad(x, pw):
    flat = tuple(v for pair in reversed(pw) for v in pair)
    return torch.nn.functional.pad(x, flat)

kernel_name = 'gather_scatter__edge_featured_mpnn_egc__graph'

def setup_inputs():

    _w = (lambda a: (lambda t: t.to(torch.bfloat16) if t.is_floating_point() else t)(torch.as_tensor(a)))
    N, deg, D, De = 12500, 64, 64, max(16, 1)
    E = N * deg
    return {
        "x": _w((lambda *s: torch.randn(*s, dtype=torch.bfloat16) * 0.2)(N, D)),
        "e_attr": _w((lambda *s: torch.randn(*s, dtype=torch.bfloat16) * 0.2)(E, De)),
        "src": _w((lambda lo, hi, *s: torch.randint(lo, hi, s))(0, N, E).to(torch.int64)),
        "dst": _w((lambda lo, hi, *s: torch.randint(lo, hi, s))(0, N, E).to(torch.int64)),
        "u_w": _w((lambda *s: torch.randn(*s, dtype=torch.bfloat16) * 0.05)(D, D)),
        "v_w": _w((lambda *s: torch.randn(*s, dtype=torch.bfloat16) * 0.05)(D, D)),
        "g_w": _w((lambda *s: torch.randn(*s, dtype=torch.bfloat16) * 0.2)(2 * D + De, D)),
    }

def reference(x, e_attr, src, dst, u_w, v_w, g_w):
    N, D = x.shape
    g_in = torch.concatenate([x[dst], x[src], e_attr], axis=-1)
    eta = _sigmoid(g_in @ g_w)
    hv = x @ v_w
    msg = eta * hv[src]
    agg = _segment_sum(msg, dst, N)
    return _silu(x @ u_w + agg)
```

```python
import re

def vr(a, n=1):
    return f"v{a}" if n == 1 else f"v[{a}:{a+n-1}]"
def sr(a, n=1):
    return f"s{a}" if n == 1 else f"s[{a}:{a+n-1}]"

TRANS = ("v_exp_f32", "v_rcp_f32", "v_log_f32", "v_rsq_f32", "v_sqrt_f32", "v_sin_f32", "v_cos_f32")

def regs_of(tok):
    tok = tok.strip()
    neg = tok.lstrip("-").replace("|", "")
    m = re.fullmatch(r"([vsa])(\d+)", neg)
    if m: return [(m.group(1), int(m.group(2)))]
    m = re.fullmatch(r"([vsa])\[(\d+):(\d+)\]", neg)
    if m: return [(m.group(1), i) for i in range(int(m.group(2)), int(m.group(3)) + 1)]
    if neg == "vcc": return [("s", "vcc")]
    if neg == "exec": return [("s", "exec")]
    if neg == "m0": return [("s", "m0")]
    return []

def parse(line):
    line = line.split(";")[0].strip()
    if not line or line.endswith(":") or line.startswith("."): return None
    parts = line.split(None, 1)
    op = parts[0]
    ops = []
    if len(parts) > 1:
        rest = parts[1]
        toks = [t.strip() for t in rest.split(",")]
        out = []
        for t in toks:
            out.append(t.split()[0] if t else t)
        ops = out
    return op, ops, line

def classify(op, ops, line):
    d = dict(kind="other", w=[], r=[], srcc=[], ab=[], passes=0, op=op, line=line)
    R = [regs_of(t) for t in ops]
    if op.startswith("v_mfma") or op.startswith("v_smfmac"):
        d["kind"] = "mfma"
        d["passes"] = 8 if "32x32" in op else 4
        d["w"] = R[0]; d["ab"] = R[1] + R[2]
        if op.startswith("v_smfmac"):
            d["srcc"] = R[0]; d["ab"] += R[3]
        else:
            d["srcc"] = R[3]
        d["r"] = d["ab"] + d["srcc"]
    elif op.startswith("v_cmpx"):
        d["kind"] = "valu"; d["w"] = R[0] + [("s", "exec")]; d["r"] = sum(R[1:], [])
    elif op.startswith("v_cmp"):
        d["kind"] = "valu"; d["w"] = R[0]; d["r"] = sum(R[1:], [])
    elif op.startswith(("v_readlane", "v_readfirstlane")):
        d["kind"] = "valu"; d["w"] = R[0]; d["r"] = sum(R[1:], []); d["rl"] = True
    elif op.startswith("v_permlane"):
        d["kind"] = "valu"; d["w"] = R[0] + R[1]; d["r"] = R[0] + R[1]; d["perm"] = True
    elif op.startswith("v_"):
        d["kind"] = "valu"
        nw = 2 if ("_co_" in op or op.startswith("v_div_scale") or op.startswith("v_mad_u64")) else 1
        d["w"] = sum(R[:nw], []); d["r"] = sum(R[nw:], [])
        if op.startswith(("v_fmac", "v_writelane", "v_dot2c", "v_pk_fmac")) or "UNUSED_PRESERVE" in line or "_dpp" in op or "row_" in line or "quad_perm" in line: d["r"] = d["r"] + R[0]
        if op.startswith("v_cndmask") and len(ops) == 3: d["r"] += [("s", "vcc")]
        if any(op.startswith(t) for t in TRANS): d["trans"] = True
        if "_dpp" in op or "row_" in line or "quad_perm" in line or "wave_" in line: d["dpp"] = True
        if "sdwa" in op and "dst_sel:DWORD" not in line and "dst_sel" in line: d["sdwaw"] = True
    elif op.startswith("ds_"):
        d["kind"] = "ds"
        if op.startswith(("ds_read", "ds_bpermute", "ds_permute", "ds_swizzle")) or "_rtn" in op:
            d["w"] = R[0]; d["r"] = sum(R[1:], [])
        else:
            d["r"] = sum(R, [])
    elif op.startswith(("buffer_", "global_")):
        d["kind"] = "vmem"
        if " lds" in line or "_lds_" in op:
            d["r"] = sum(R, []) + [("s", "m0")]; d["ldsdma"] = True
        elif "load" in op or (" sc0" in line and "atomic" in op):
            d["w"] = R[0]; d["r"] = sum(R[1:], [])
        else:
            d["r"] = sum(R, [])
            if "x4" in op or "x3" in op:
                d["wide_store"] = R[0] if op.startswith("buffer_") else R[1]
    elif op.startswith("s_"):
        d["kind"] = "salu"
        if op in ("s_nop",): d["nop"] = int(ops[0], 0) + 1
        elif op.startswith(("s_cmp", "s_waitcnt", "s_barrier", "s_branch", "s_cbranch", "s_endpgm", "s_setprio", "s_bitcmp", "s_sleep")):
            d["r"] = sum(R, [])
        else:
            d["w"] = R[0] if R else []; d["r"] = sum(R[1:], [])
            if "saveexec" in op: d["w"] = d["w"] + [("s", "exec")]
    return d

def need(p, c):
    pw, cr, cw = set(p["w"]), set(c["r"]), set(c["w"])
    n = 0
    isv = lambda s: {x for x in s if x[0] in "va"}
    iss = lambda s: {x for x in s if x[0] == "s"}
    if p["kind"] == "valu":
        vw = isv(pw); sw = iss(pw)
        if c["kind"] == "mfma" and vw & cr: n = max(n, 2)
        if c["kind"] == "mfma" and ("s", "exec") in sw: n = max(n, 4)
        if c["kind"] == "valu":
            if p.get("trans") and not c.get("trans") and vw & cr: n = max(n, 1)
            if c.get("rl") and vw & cr: n = max(n, 1)
            if c.get("perm") and vw & cr: n = max(n, 2)
            if c.get("dpp") and vw & cr: n = max(n, 2)
            if c.get("dpp") and ("s", "exec") in sw: n = max(n, 5)
            if (c.get("rl") or c["op"].startswith("v_writelane") or c.get("perm")) and ("s", "exec") in sw: n = max(n, 4)
            if sw & cr: n = max(n, 4 if (c.get("rl") or c["op"].startswith("v_writelane")) else 2)
            if p.get("sdwaw") and vw & (cr | cw): n = max(n, 1)
        if c["kind"] == "vmem" and sw & cr: n = max(n, 5)
    if p["kind"] == "salu":
        if ("s", "m0") in pw and c.get("ldsdma"): n = max(n, 1)
    if p["kind"] == "mfma":
        P = p["passes"]
        big = {2: 5, 4: 8, 8: 12, 16: 20}[P]
        if c["kind"] == "mfma":
            if pw & set(c["ab"]): n = max(n, big)
            ov = pw & set(c["srcc"])
            if ov:
                if set(c["srcc"]) == pw and c["passes"] == P: pass
                else: n = max(n, {2: 4, 4: 6, 8: 10, 16: 18}[P])
        elif c["kind"] in ("valu", "ds", "vmem"):
            if pw & (cr | cw): n = max(n, big)
        if c["kind"] == "valu" and set(p["srcc"]) & cw: n = max(n, {2: 1, 4: 3, 8: 7, 16: 15}[P])
    if p.get("wide_store") and c["kind"] == "valu" and set(p["wide_store"]) & cw: n = max(n, 2)
    if p.get("wide_store") and c["kind"] != "valu" and set(p["wide_store"]) & cw: n = max(n, 1)
    return n

def check(lines, name=""):
    ins = []
    for l in lines:
        for ll in l.split("\n"):
            p = parse(ll)
            if p: ins.append(classify(*p))
    bad = 0
    for j, c in enumerate(ins):
        dist = 0
        for i in range(j - 1, max(-1, j - 24), -1):
            p = ins[i]
            n = need(p, c)
            if n > dist:
                print(f"HAZARD[{name}] need {n} have {dist}: '{p['line']}' -> '{c['line']}'")
                bad += 1
            dist += p.get("nop", 1)
            if dist >= 20: break
    return bad

def cost(line):
    op = line.split()[0]
    if any(op.startswith(t) for t in TRANS): return 8
    if op.startswith("v_"): return 4
    return 0
```

```python
import sys
from asmlib import *

N = 12500; NE = 800000; CH = 3200; NCH = 250
REC_OFF = 0; TAB_OFF = 3200000; FRAG_OFF = 3456000
TS_OFF = 8 << 20
LOG2E = 1.4426950408889634
import struct
def f2u(x): return struct.unpack("<I", struct.pack("<f", x))[0]

class Asm:
    def __init__(self): self.L = []
    def __call__(self, s):
        for l in s.split("\n"):
            l = l.strip()
            if l: self.L.append(l)
    def ext(self, lst):
        for s in lst: self(s)

def srd(a, d, base, size, off=0):
    if off:
        a(f"s_add_u32 s{d}, s{base}, {off}\ns_addc_u32 s{d+1}, s{base+1}, 0")
    elif d != base:
        a(f"s_mov_b32 s{d}, s{base}\ns_mov_b32 s{d+1}, s{base+1}")
    a(f"s_mov_b32 s{d+2}, {size}\ns_mov_b32 s{d+3}, 0x20000")

def dpp_scan(a, v):
    for sh in (1, 2, 4, 8):
        a(f"s_nop 1\nv_add_u32_dpp v{v}, v{v}, v{v} row_shr:{sh} row_mask:0xf bank_mask:0xf bound_ctrl:1")
    a(f"s_nop 1\nv_add_u32_dpp v{v}, v{v}, v{v} row_bcast:15 row_mask:0xa bank_mask:0xf")
    a(f"s_nop 1\nv_add_u32_dpp v{v}, v{v}, v{v} row_bcast:31 row_mask:0xc bank_mask:0xf")

def stamp(a, opt, idx, kern):
    if opt.get("ts"):
        a(f"s_memrealtime s[{60+2*idx}:{61+2*idx}]")

def stamp_store(a, opt, n, kern, wsreg, wavereg, nw):
    if not opt.get("ts"): return
    a("s_waitcnt lgkmcnt(0)")
    a(f"s_add_u32 s92, s{wsreg}, {TS_OFF + kern*(1<<20)}\ns_addc_u32 s93, s{wsreg+1}, 0\ns_mov_b32 s94, 0x100000\ns_mov_b32 s95, 0x20000")
    a(f"s_mul_i32 s96, s2, {nw}\ns_add_u32 s96, s96, s{wavereg}\ns_lshl_b32 s96, s96, 6")
    a("s_mov_b64 exec, 1")
    for i in range(n):
        a(f"v_mov_b32 v2, s{60+2*i}\nv_mov_b32 v3, {4*i}\nbuffer_store_dword v2, v3, s[92:95], s96 offen")
    a("s_mov_b64 exec, -1")

K1_CNT = 0; K1_BASE = 1024; K1_SRT = 2048; K1_LDS = 2048 + CH * 4

def gen_k1(opt):
    a = Asm()
    a(".globl bin_kernel\n.p2align 8\n.type bin_kernel,@function\nbin_kernel:")
    a(f"s_cmp_ge_u32 s2, {NCH+3}\ns_cbranch_scc1 K1_end")
    stamp(a, opt, 0, 0)
    a(f"s_cmp_ge_u32 s2, {NCH}\ns_cbranch_scc1 K1_weights")
    a("s_load_dwordx4 s[4:7], s[0:1], 16")
    a("s_load_dwordx2 s[16:17], s[0:1], 72    ; ws")
    a("v_lshrrev_b32 v1, 6, v0")
    a("v_lshlrev_b32 v2, 4, v0                ; t*16")
    a("v_readfirstlane_b32 s28, v1            ; wave")
    a("v_and_b32 v1, 63, v0                   ; lane")
    a(f"s_mul_i32 s3, s2, {CH*4}")
    a("v_mov_b32 v20, 0\nv_mov_b32 v21, 0\nv_mov_b32 v22, 0\nv_mov_b32 v23, 0\nv_mov_b32 v24, 1")
    a("v_lshlrev_b32 v3, 4, v1                ; lane*16")
    a(f"v_cmp_gt_u32 s[30:31], {CH//4 - 768}, v1")
    a("s_cmp_eq_u32 s28, 12\ns_cselect_b64 s[30:31], s[30:31], -1")
    a("s_waitcnt lgkmcnt(0)")
    srd(a, 8, 6, NE*4)
    srd(a, 4, 4, NE*4)
    a("s_mov_b64 exec, s[30:31]")
    a("buffer_load_dwordx4 v[4:7], v2, s[8:11], s3 offen\nbuffer_load_dwordx4 v[8:11], v2, s[4:7], s3 offen")
    a("s_mov_b64 exec, -1")
    srd(a, 20, 16, NCH*1024, TAB_OFF)
    srd(a, 16, 16, NE*4)
    a("s_cmp_lg_u32 s28, 0\ns_cbranch_scc1 K1_nozero")
    a(f"ds_write_b128 v3, v[20:23] offset:{K1_CNT}")
    a("s_waitcnt lgkmcnt(0)")
    a("K1_nozero:")
    a("s_barrier")
    a("s_mov_b64 exec, s[30:31]")
    a("v_lshlrev_b32 v25, 2, v0")
    a("s_mov_b32 s29, 0xfc000000")
    a("s_waitcnt vmcnt(1)")
    stamp(a, opt, 1, 0)
    for i in range(4):
        a(f"v_lshlrev_b32_sdwa v{12+i}, 2, v{4+i} dst_sel:DWORD dst_unused:UNUSED_PAD src0_sel:DWORD src1_sel:BYTE_0")
        a(f"ds_add_rtn_u32 v{16+i}, v{12+i}, v24 offset:{K1_CNT}")
    for i in range(4):
        a(f"v_lshlrev_b32 v{4+i}, 18, v{4+i}")
        if i: a(f"v_add_u32 v26, {i}, v25")
        a(f"v_and_or_b32 v{4+i}, v{4+i}, s29, v{26 if i else 25}")
    a("s_waitcnt vmcnt(0)")
    for i in range(4):
        a(f"v_lshl_or_b32 v{4+i}, v{8+i}, 12, v{4+i}")
    a("s_mov_b64 exec, -1")
    a("s_waitcnt lgkmcnt(0)\ns_barrier")
    stamp(a, opt, 2, 0)
    a(f"ds_read_b128 v[20:23], v3 offset:{K1_CNT}")
    a("s_waitcnt lgkmcnt(0)")
    a("v_add_u32 v9, v20, v21\nv_add_u32 v10, v9, v22\nv_add_u32 v11, v10, v23\nv_mov_b32 v26, v11")
    dpp_scan(a, 26)
    a("v_sub_u32 v26, v26, v11")
    a("v_add_u32 v27, v26, v20\nv_add_u32 v28, v26, v9\nv_add_u32 v29, v26, v10")
    for i in range(4):
        a(f"v_lshlrev_b32 v{32+i}, 2, v{26+i}")
    a(f"ds_write_b128 v3, v[32:35] offset:{K1_BASE}")
    a("s_cmp_lg_u32 s28, 0\ns_cbranch_scc1 K1_notab")
    for i in range(4):
        a(f"v_lshl_or_b32 v{36+i}, v{20+i}, 16, v{26+i}")
    a("s_lshl_b32 s33, s2, 10")
    a("buffer_store_dwordx4 v[36:39], v3, s[20:23], s33 offen")
    a("K1_notab:")
    a("s_mov_b64 exec, s[30:31]")
    for i in range(4):
        a(f"ds_read_b32 v{12+i}, v{12+i} offset:{K1_BASE}")
    for i in range(4):
        a(f"s_waitcnt lgkmcnt({3-i if i < 1 else 3})")
        a(f"v_lshl_add_u32 v{12+i}, v{16+i}, 2, v{12+i}")
        a(f"ds_write_b32 v{12+i}, v{4+i} offset:{K1_SRT}")
    a("s_waitcnt lgkmcnt(0)\ns_barrier")
    stamp(a, opt, 3, 0)
    a(f"ds_read_b128 v[4:7], v2 offset:{K1_SRT}")
    a("s_waitcnt lgkmcnt(0)")
    a("buffer_store_dwordx4 v[4:7], v2, s[16:19], s3 offen")
    a("s_mov_b64 exec, -1")
    if opt.get("ts"):
        a("s_waitcnt vmcnt(0)")
        stamp(a, opt, 4, 0)
        stamp_store(a, opt, 5, 0, 16, 28, 13)
    a("s_endpgm")
    a("K1_weights:")
    a("s_load_dwordx4 s[4:7], s[0:1], 32      ; u_w, v_w")
    a("s_load_dwordx2 s[8:9], s[0:1], 48      ; g_w")
    a("s_load_dwordx2 s[16:17], s[0:1], 72    ; ws")
    a("v_lshrrev_b32 v1, 6, v0\ns_nop 0\nv_readfirstlane_b32 s28, v1")
    a(f"s_sub_u32 s3, s2, {NCH}\ns_mul_i32 s3, s3, 13\ns_add_u32 s3, s3, s28")
    a("s_cmp_ge_u32 s3, 34\ns_cbranch_scc1 K1_end")
    a("v_and_b32 v1, 63, v0")
    a("s_waitcnt lgkmcnt(0)")
    a(f"s_mov_b32 s12, s8\ns_mov_b32 s13, s9\ns_mov_b32 s14, {144*128}\ns_mov_b32 s15, 0x20000")
    a(f"s_mov_b32 s29, 64\ns_mov_b32 s30, s3\ns_mov_b32 s31, {hex(f2u(-LOG2E))}")
    a("s_cmp_lt_u32 s3, 8\ns_cbranch_scc1 K1_wgo")
    a("s_mov_b32 s29, 128\ns_sub_u32 s30, s3, 16\ns_lshl_b32 s30, s30, 2")
    a("s_and_b32 s32, s3, 0xfe\ns_cmp_eq_u32 s32, 16\ns_cbranch_scc1 K1_wgo")
    a("s_mov_b32 s29, 0\ns_mov_b32 s31, 1.0\ns_sub_u32 s30, s3, 18\ns_cmp_lt_u32 s30, 8\ns_cbranch_scc1 K1_wgo")
    a(f"s_mov_b32 s14, {64*128}")
    a("s_mov_b32 s12, s6\ns_mov_b32 s13, s7\ns_sub_u32 s30, s3, 8\ns_cmp_lt_u32 s3, 16\ns_cbranch_scc1 K1_wgo")
    a("s_mov_b32 s12, s4\ns_mov_b32 s13, s5\ns_sub_u32 s30, s3, 26")
    a("K1_wgo:")
    a("s_and_b32 s32, s30, 3\ns_lshl_b32 s32, s32, 4\ns_add_u32 s32, s32, s29\ns_lshl_b32 s32, s32, 7   ; (row0+16s)*128")
    a("s_lshr_b32 s33, s30, 2\ns_lshl_b32 s33, s33, 6\ns_add_u32 s32, s32, s33                        ; + 64*T")
    a("v_lshrrev_b32 v2, 5, v1\nv_lshlrev_b32 v2, 10, v2\nv_and_b32 v3, 31, v1\nv_lshl_add_u32 v2, v3, 1, v2")
    for q in range(8):
        a(f"buffer_load_ushort v{4+q}, v2, s[12:15], s32 offen offset:{128*q}")
    srd(a, 16, 16, 34*1024, FRAG_OFF)
    a("s_lshl_b32 s33, s3, 10\nv_lshlrev_b32 v3, 4, v1")
    a("s_waitcnt vmcnt(0)")
    for q in range(8):
        a(f"v_lshlrev_b32 v{4+q}, 16, v{4+q}\nv_mul_f32 v{4+q}, s31, v{4+q}")
    for q in range(4):
        a(f"v_cvt_pk_bf16_f32 v{12+q}, v{4+2*q}, v{5+2*q}")
    a("buffer_store_dwordx4 v[12:15], v3, s[16:19], s33 offen")
    a("K1_end:\ns_endpgm")
    return a.L

CNT = 0; BASES = 256; FLAG = 512; MAXL = 516
STG = 1024; WSTG = 10240; BUF = 5120
LIST = STG + 8 * WSTG; CAPG = 128; CAP = CAPG * 32
QI = LIST + CAP * 8
XA = (QI + CAP + 64 + 127) // 128 * 128
ACC = XA + 52 * 128
K2_LDS = ACC + 64 * 512
assert K2_LDS <= 163840
RMAX = 20
FBJ = 6

G = [16, 32]; R = [48, 64]; H = [80, 96]
X = 112; E = 128; XAB = [132, 136]; SEL = 140; ONE = 144
WB = 148; WV = 180; WC = 212
AC = [220, 221]; CUR = [222, 223]; TMP = 224; T2 = 226
XW = 228; EW = 232; W = [233, 234]; XAA = 235
COL = 236; EH = 240; XAC = 241; N8 = 242; AR = 243; ER = 247; LPX = 248; LPE = 249; QP = 250
CX = 251; CE = 252; CQ = 253
REC = 16; RANK = 36; CA = 56; PAIR = 76
sF = [32, 36]; sFO = [34, 35]
sWV = 28; sB = 29; sN = 30; sSTG = 38; sRND = 39; sMODE = 40; sXSZ = 41; sESZ = 42; sMSK = 43; sFC = 44; sG = 45; sNR = 50
MF = "v_mfma_f32_32x32x16_bf16"
def mf(d, A, B, c): return f"{MF} {vr(d,16)}, {vr(A,4)}, {vr(B,4)}, {c if c == '0' else vr(c,16)}"

def weave(val, extra):
    out = []
    ex = sorted(extra, key=lambda t: t[0])
    k = 0
    for i, x in enumerate(val + [None]):
        while k < len(ex) and ex[k][0] <= i:
            out += ex[k][1]; k += 1
        if x is not None: out.append(x)
    assert k == len(ex)
    return out

def dma_group(p, ofs):
    b = []
    for k in range(4):
        b.append([f"v_lshl_or_b32 v{XW+k}, v{XW+k}, 7, v{COL+k}", f"s_add_u32 m0, s{sSTG}, {p*BUF + k*1024}", "s_nop 0",
                  f"buffer_load_dwordx4 v{XW+k}, s[8:11], 0 offen lds"])
    b.append([f"v_or_b32 v{EW}, v{EW}, v{EH}", f"s_add_u32 m0, s{sSTG}, {p*BUF + 4096}", "s_nop 0",
              f"buffer_load_dwordx4 v{EW}, s[12:15], 0 offen lds"])
    return b

def list_reads(ofs):
    d = ofs * 32
    return [f"ds_read2_b32 {vr(XW,2)}, v{LPX} offset0:{d} offset1:{d+2}",
            f"ds_read2_b32 {vr(XW+2,2)}, v{LPX} offset0:{d+4} offset1:{d+6}",
            f"ds_read_b32 v{EW}, v{LPE} offset:{ofs*128+4}"]

def dma_enable(thr):
    return [f"s_cmp_gt_u32 s{sN}, {thr}", f"s_cselect_b32 s10, s{sXSZ}, 0", f"s_cselect_b32 s14, s{sESZ}, 0"]

def bpart(T, par, tag, stubs):
    r, h = R[T], H[T]
    rc = lambda q: [f"v_rcp_f32 v{r+4*q+i}, v{r+4*q+i}" for i in range(4)]
    def fm(q):
        lab = f"{tag}_{q}"
        stubs.append((lab, T, par, q))
        return [f"s_bitcmp1_b32 s{sFO[par]}, {4*q}\ns_cbranch_scc1 L_fl_{lab}\nL_bk_{lab}:\nv_fmac_f32 v{AC[T]}, v{r+4*q}, v{h+4*q}"] + \
               [f"v_fmac_f32 v{AC[T]}, v{r+4*q+i}, v{h+4*q+i}" for i in range(1, 4)]
    return rc(0) + rc(1) + fm(0) + rc(2) + fm(1) + rc(3) + fm(2) + fm(3)

def stub(lab, T, par, q):
    return [f"L_fl_{lab}:",
            f"s_bitcmp1_b32 s{sF[par]}, {4*q}", "s_cselect_b32 exec_lo, -1, 0",
            f"s_bitcmp1_b32 s{sF[par]+1}, {4*q}", "s_cselect_b32 exec_hi, -1, 0",
            f"v_cvt_f64_f32 {vr(TMP,2)}, v{AC[T]}",
            f"v_mov_b32_dpp v{T2}, v{W[par]} row_newbcast:{4*q} row_mask:0xf bank_mask:0xf",
            f"ds_add_f64 v{CUR[T]}, {vr(TMP,2)} offset:{256*T}",
            f"v_mov_b32 v{AC[T]}, 0",
            f"v_and_b32 v{T2}, s{sMSK}, v{T2}",
            f"v_lshl_add_u32 v{CUR[T]}, v{T2}, 2, v{N8}",
            "s_mov_b64 exec, -1", f"s_branch L_bk_{lab}"]

def gate_chain(T):
    g = G[T]
    return [mf(g, SEL, XAB[T], '0'), mf(g, E, WC+4*T, g)] + [mf(g, X+4*s, WB+16*T+4*s, g) for s in range(4)]
def hv_chain(T):
    return [mf(H[T], X+4*s, WV+16*T+4*s, '0' if s == 0 else H[T]) for s in range(4)]

def slot0(u, first, stubs):
    ex = [f"v_exp_f32 v{G[0]+i}, v{G[0]+i}" for i in range(16)]
    g, h = gate_chain(1), hv_chain(0)
    m1 = mf(R[0], ONE, ONE, G[0])
    d = dma_group(u, u + 2)
    wread = [f"ds_read_b32 v{W[u^1]}, v{QP} offset:{(u+1)*16}"]
    if first:
        extra = [(0, list_reads(u+2) + dma_enable(2) + [g[0]]), (2, [h[0]]), (4, [g[1]]), (6, [h[1]]), (8, [g[2], "s_waitcnt lgkmcnt(0)"] + d[0]),
                 (10, [h[2]] + d[1]), (12, [g[3]] + d[2]), (14, [h[3]] + d[3]), (16, [g[4]] + d[4] + [m1, g[5]] + wread + ["s_nop 7"])]
        return weave(ex, extra)
    val = ex + bpart(1, u ^ 1, f"a{u}", stubs)
    extra = [(0, list_reads(u+2) + dma_enable(2) + [g[0]]), (3, [h[0]]), (7, [g[1]]), (8, ["s_waitcnt lgkmcnt(0)"] + d[0]), (10, [h[1]]),
             (13, [g[2]]), (14, d[1]), (18, [m1]), (20, d[2]), (21, [g[3]]), (25, [h[2]]), (26, d[3]), (29, [g[4]]), (32, d[4]), (33, [h[3]]), (37, [g[5]]),
             (48, wread)]
    return weave(val, extra)

def slot1(u, stubs):
    ex = [f"v_exp_f32 v{G[1]+i}, v{G[1]+i}" for i in range(16)]
    val = ex + bpart(0, u, f"b{u}", stubs)
    g, h = gate_chain(0), hv_chain(1)
    m1 = mf(R[1], ONE, ONE, G[1])
    p = u ^ 1
    xr = lambda s: f"ds_read_b128 {vr(X+4*s,4)}, v{AR+s} offset:{p*BUF}"
    extra = [(0, ["s_waitcnt vmcnt(5)", f"ds_read_b128 {vr(E,4)}, v{ER} offset:{p*BUF}", h[0], xr(0)]),
             (2, ["s_waitcnt lgkmcnt(2)", f"v_and_or_b32 v{XAA}, v{W[p]}, s{sMSK}, v{XAC}", f"v_cmp_gt_i32 s[{sF[p]}:{sF[p]+1}], 0, v{W[p]}",
                  f"ds_read_b64_tr_b16 {vr(XAB[0],2)}, v{XAA}", f"ds_read_b64_tr_b16 {vr(XAB[1],2)}, v{XAA} offset:64"]),
             (4, [h[1], xr(1)]), (8, [h[2], xr(2), f"s_or_b32 s{sFO[p]}, s{sF[p]}, s{sF[p]+1}"]), (12, [h[3], xr(3)]),
             (15, ["s_waitcnt lgkmcnt(4)", g[0]]), (18, [m1]), (21, [g[1]]), (25, [g[2]]),
             (29, ["s_waitcnt lgkmcnt(2)", g[3]]), (33, ["s_waitcnt lgkmcnt(1)", g[4]]), (37, ["s_waitcnt lgkmcnt(0)", g[5]])]
    return weave(val, extra)

def load_records(a, tag, nld):
    a("v_lshlrev_b32 v8, 2, v6")
    for k in range(nld):
        a(f"v_cmpx_lt_u32 vcc, {4*k}, v7")
        a(f"s_cbranch_execz L_ld_{tag}")
        a(f"buffer_load_dwordx4 {vr(REC+4*k,4)}, v8, s[16:19], 0 offen offset:{16*k}")
        if k == 2: a("s_mov_b32 s51, 1")
    a(f"L_ld_{tag}:\ns_mov_b64 exec, -1")

def gen_k2(opt):
    a = Asm()
    KN = "gather_scatter__edge_featured_mpnn_egc__graph_kernel"
    a(f".globl {KN}\n.p2align 8\n.type {KN},@function\n{KN}:")
    a("s_cmp_ge_u32 s2, 256\ns_cbranch_scc1 K2_end")
    stamp(a, opt, 0, 1)
    a("s_load_dwordx4 s[4:7], s[0:1], 0       ; x, e_attr")
    a("s_load_dwordx2 s[24:25], s[0:1], 56    ; out")
    a("s_load_dwordx2 s[16:17], s[0:1], 72    ; ws")
    a("v_lshrrev_b32 v2, 6, v0\nv_and_b32 v1, 63, v0")
    a(f"v_readfirstlane_b32 s{sWV}, v2")
    a(f"s_and_b32 s3, s2, 7\ns_lshl_b32 s3, s3, 5\ns_lshr_b32 s{sB}, s2, 3\ns_or_b32 s{sB}, s{sB}, s3      ; bin")
    a(f"v_lshrrev_b32 v9, 1, v0                ; chunk")
    a(f"s_lshl_b32 s3, s{sB}, 2\nv_lshl_add_u32 v2, v9, 10, s3")
    a(f"s_lshl_b32 s31, s{sWV}, 2\nv_lshrrev_b32 v3, 4, v1\nv_add_u32 v3, s31, v3\nv_xor_b32 v3, v3, v1\nv_and_b32 v3, 7, v3\nv_lshlrev_b32 v3, 4, v3")
    a(f"v_lshrrev_b32 v4, 3, v0\nv_lshl_add_u32 v3, v4, 15, v3\ns_lshl_b32 s3, s{sB}, 7\nv_add_u32 v3, s3, v3")
    a("v_lshlrev_b32 v10, 4, v1                ; lane*16")
    a(f"s_lshr_b32 s46, s{sWV}, 1\ns_lshl_b32 s46, s46, 12\ns_add_u32 s46, s46, {FRAG_OFF + 18*1024}")
    a(f"s_lshl_b32 s47, s{sWV}, 10\ns_add_u32 m0, s47, {STG}")
    a("s_waitcnt lgkmcnt(0)")
    srd(a, 20, 16, NCH*1024, TAB_OFF)
    a("buffer_load_dword v2, v2, s[20:23], 0 offen")
    srd(a, 12, 6, NE*32)
    srd(a, 4, 4, N*128)
    a("buffer_load_dwordx4 v3, s[4:7], 0 offen lds")
    srd(a, 52, 16, FRAG_OFF + 34*1024)
    for s in range(4):
        a(f"buffer_load_dwordx4 {vr(96+4*s,4)}, v10, s[52:55], s46 offen offset:{1024*s}")
    srd(a, 8, 4, N*128)
    srd(a, 16, 16, NE*4)
    srd(a, 24, 24, N*128)
    a(f"s_mov_b32 s{sXSZ}, {N*128}\ns_mov_b32 s{sESZ}, {NE*32}\ns_mov_b32 s{sMSK}, 0x3ff80\ns_mov_b32 s{sFC}, 0xfc")
    a(f"s_mov_b32 s{sMODE}, 0\ns_mov_b32 s{sRND}, 0\ns_mov_b32 s{sNR}, 1")
    a(f"s_mul_i32 s{sSTG}, s{sWV}, {WSTG}\ns_add_u32 s{sSTG}, s{sSTG}, {STG}")
    a("v_mov_b32 v11, 0\nv_lshlrev_b32 v12, 2, v1\nv_mov_b32 v13, 1")
    a(f"s_cmp_lg_u32 s{sWV}, 0\ns_cbranch_scc1 L_nz")
    a(f"ds_write_b32 v12, v11 offset:{CNT}\nds_write_b32 v12, v11 offset:{FLAG}")
    a("L_nz:")
    a("v_lshrrev_b32 v14, 5, v1                ; lane>>5")
    a("v_and_b32 v15, 31, v1                   ; m / n")
    a("v_and_b32 v4, 7, v1\nv_lshlrev_b32 v5, 2, v14\nv_xor_b32 v4, v4, v5\nv_lshlrev_b32 v4, 4, v4")
    for k in range(4): a(f"v_xor_b32 v{COL+k}, {16*k}, v4")
    a(f"v_and_b32 v4, 1, v1\nv_xor_b32 v4, v4, v14\nv_lshlrev_b32 v{EH}, 4, v4")
    a(f"v_bfe_u32 v4, v1, 4, 1\nv_lshlrev_b32 v4, 5, v4\nv_and_b32 v5, 3, v1\nv_lshl_add_u32 v{XAC}, v5, 3, v4")
    a(f"v_lshlrev_b32 v4, 3, v15\nv_add_u32 v{N8}, {hex((ACC - 4*XA) & 0xffffffff)}, v4")
    a("v_and_b32 v4, 3, v15\nv_lshlrev_b32 v4, 3, v4\nv_and_b32 v5, 4, v15\nv_or_b32 v4, v4, v5\nv_lshrrev_b32 v5, 3, v15\nv_or_b32 v4, v4, v5")
    a(f"v_lshlrev_b32 v4, 7, v4\nv_add_u32 v4, s{sSTG}, v4")
    a("v_and_b32 v5, 7, v15\nv_xor_b32 v5, v5, v14\nv_lshlrev_b32 v5, 4, v5")
    for s in range(4): a(f"v_xor_b32 v6, {32*s}, v5\nv_add_u32 v{AR+s}, v4, v6")
    a(f"v_lshrrev_b32 v4, 4, v15\nv_xor_b32 v4, v4, v14\nv_lshlrev_b32 v4, 4, v4\nv_lshl_add_u32 v4, v15, 5, v4\nv_add_u32 v4, s{sSTG}, v4\nv_add_u32 v{ER}, 4096, v4")
    a(f"v_bfe_u32 v4, v1, 3, 2\nv_lshlrev_b32 v4, 5, v4\nv_add_u32 v{CX}, {LIST}, v4")
    a(f"v_lshrrev_b32 v4, 4, v1\nv_lshlrev_b32 v4, 2, v4\nv_bfe_u32 v5, v1, 1, 2\nv_add_lshl_u32 v4, v4, v5, 3\nv_add_u32 v{CE}, {LIST}, v4")
    a(f"v_bfe_u32 v4, v1, 2, 2\nv_lshlrev_b32 v4, 2, v4\nv_add_u32 v{CQ}, {QI}, v4")
    a("v_bfe_u32 v4, v15, 2, 1\nv_cmp_eq_u32 vcc, v4, v14\nv_bfe_u32 v5, v15, 3, 1\nv_lshlrev_b32 v5, 4, v5\nv_mov_b32 v6, 0x3f80\nv_lshlrev_b32 v6, v5, v6")
    a("v_cndmask_b32 v6, 0, v6, vcc\nv_cmp_gt_u32 vcc, 16, v15\ns_nop 1")
    a(f"v_cndmask_b32 v{SEL}, 0, v6, vcc\nv_cndmask_b32 v{SEL+1}, v6, v11, vcc\nv_mov_b32 v{SEL+2}, 0\nv_mov_b32 v{SEL+3}, 0")
    for i in range(4): a(f"v_mov_b32 v{ONE+i}, 0x3e803e80")
    for t in range(2): a(f"v_mov_b32 v{XAB[t]+2}, 0\nv_mov_b32 v{XAB[t]+3}, 0")
    a(f"v_mul_u32_u24 v4, {CH}, v9")
    a("v_and_b32 v9, 1, v0")
    a("s_waitcnt vmcnt(5)")
    stamp(a, opt, 1, 1)
    a("v_lshrrev_b32 v3, 16, v2")
    a("v_and_b32 v5, 0xffff, v2\nv_add_u32 v5, v5, v4")
    a("v_add_u32 v6, 1, v3\nv_lshrrev_b32 v6, 1, v6\nv_cmp_eq_u32 vcc, 1, v9\nv_sub_u32 v7, v3, v6")
    a(f"s_nop 0\nv_cndmask_b32 v7, v6, v7, vcc\nv_cndmask_b32 v6, 0, v6, vcc\nv_min_u32 v7, {RMAX}, v7\nv_add_u32 v6, v6, v5")
    a("s_mov_b32 s51, 0")
    load_records(a, "f", RMAX // 4)
    for i in range(18):
        if i % 4 == 0: a(f"s_mov_b32 s46, {FRAG_OFF + i*1024}")
        a(f"buffer_load_dwordx4 {vr(WB+4*i,4)}, v10, s[52:55], s46 offen offset:{1024*(i%4)}")
    a("s_cmp_eq_u32 s51, 1\ns_cbranch_scc1 L_w3\ns_waitcnt vmcnt(18)\nL_w3:\ns_waitcnt vmcnt(21) lgkmcnt(0)")
    a("s_barrier")
    a(f"v_cmp_lt_u32 vcc, {2*RMAX}, v3\ns_cbranch_vccz L_noflag")
    a(f"ds_write_b32 v11, v13 offset:{FLAG}")
    a("L_noflag:")
    a(f"s_and_b32 s46, s{sWV}, 1                ; M tile\ns_bfe_u32 s47, s{sWV}, 0x10001          ; N tile")
    a("v_lshrrev_b32 v8, 1, v15\nv_and_b32 v8, 7, v8\nv_xor_b32 v8, v8, v14\nv_lshlrev_b32 v8, 4, v8\nv_lshl_add_u32 v8, v15, 7, v8")
    a(f"s_lshl_b32 s48, s46, 12\ns_add_u32 s48, s48, {STG}")
    for s in range(4):
        a(f"v_xor_b32 v2, {32*s}, v8\nv_add_u32 v2, s48, v2\nds_read_b128 {vr(X+4*s,4)}, v2")
    D = 76
    for s in range(4):
        a(f"s_waitcnt lgkmcnt({3-s})")
        a(mf(D, X+4*s, 96+4*s, '0' if s == 0 else D))
    a(f"s_lshl_b32 s48, s46, 5\nv_lshl_add_u32 v2, v14, 2, s48")
    a(f"s_cmp_ge_u32 s{sWV}, 4\ns_cbranch_scc1 L_xu")
    a(f"s_lshl_b32 s48, s47, 6\ns_add_u32 s48, s48, {XA}\nv_lshl_add_u32 v2, v2, 7, s48\nv_lshl_add_u32 v2, v15, 1, v2")
    a(f"s_mov_b32 s48, {hex(f2u(-LOG2E))}\ns_nop 4")
    for i in range(4):
        if i == 2: a("s_cmp_eq_u32 s46, 0\ns_cselect_b32 exec_hi, -1, 0")
        if i == 3: a("s_cbranch_scc0 L_xdone")
        for j in range(4): a(f"v_mul_f32 v{D+4*i+j}, s48, v{D+4*i+j}")
        for j in (0, 2):
            a(f"v_cvt_pk_bf16_f32 v{D+4*i+j}, v{D+4*i+j}, v{D+4*i+j+1}")
            a(f"ds_write_b16 v2, v{D+4*i+j} offset:{(8*i+j)*128}\nds_write_b16_d16_hi v2, v{D+4*i+j} offset:{(8*i+j+1)*128}")
    a("s_branch L_xdone")
    a("L_xu:")
    a(f"s_lshl_b32 s48, s47, 8\ns_add_u32 s48, s48, {ACC}\nv_lshl_add_u32 v2, v2, 9, s48\nv_lshl_add_u32 v2, v15, 3, v2\ns_nop 5")
    for i in range(4):
        if i == 2: a("s_cmp_eq_u32 s46, 0\ns_cselect_b32 exec_hi, -1, 0")
        if i == 3: a("s_cbranch_scc0 L_xdone")
        for j in range(4):
            a(f"v_cvt_f64_f32 {vr(96+2*j,2)}, v{D+4*i+j}\nds_write_b64 v2, {vr(96+2*j,2)} offset:{(8*i+j)*512}")
    a("L_xdone:\ns_mov_b64 exec, -1")
    a("s_waitcnt vmcnt(18)")
    stamp(a, opt, 2, 1)
    a("L_count:")
    for k in range(RMAX):
        a(f"v_cmpx_lt_u32 vcc, {k}, v7")
        if k >= 4 and k % 2 == 0: a("s_cbranch_execz L_cdone")
        a(f"v_and_b32_sdwa v{CA+k}, s{sFC}, v{REC+k} dst_sel:DWORD dst_unused:UNUSED_PAD src0_sel:DWORD src1_sel:BYTE_3")
        a(f"ds_add_rtn_u32 v{RANK+k}, v{CA+k}, v13 offset:{CNT}")
        a(f"v_bfe_u32 v{PAIR+2*k}, v{REC+k}, 12, 14\nv_and_b32 v8, 0xfff, v{REC+k}\nv_add_lshl_u32 v{PAIR+2*k+1}, v8, v4, 5")
    a("L_cdone:\ns_mov_b64 exec, -1")
    a("s_waitcnt lgkmcnt(0)\ns_barrier")
    stamp(a, opt, 3, 1)
    a(f"ds_read_b32 v16, v12 offset:{CNT}\nds_read_b32 v17, v11 offset:{FLAG}")
    a("s_waitcnt lgkmcnt(0)")
    a("v_add_u32 v18, 3, v16\nv_lshrrev_b32 v18, 2, v18\nv_mov_b32 v19, v18\nv_readfirstlane_b32 s46, v17")
    dpp_scan(a, 19)
    a("s_nop 0\nv_readlane_b32 s47, v19, 63             ; Q")
    a(f"v_sub_u32 v19, v19, v18\nv_lshlrev_b32 v20, 5, v19\nv_add_u32 v20, {LIST}, v20")
    a(f"ds_write_b32 v12, v20 offset:{BASES}")
    a(f"s_add_u32 s{sG}, s47, 7\ns_lshr_b32 s{sG}, s{sG}, 3")
    a(f"s_cmp_gt_u32 s{sG}, {CAPG}\ns_cselect_b32 s46, 1, s46\ns_andn2_b32 s46, s46, s{sMODE}\ns_cmp_lg_u32 s46, 0\ns_cbranch_scc1 L_fb_enter")
    for k in range(RMAX):
        a(f"v_cmpx_lt_u32 vcc, {k}, v7")
        if k >= 4 and k % 2 == 0: a("s_cbranch_execz L_bdone")
        a(f"ds_read_b32 v{CA+k}, v{CA+k} offset:{BASES}")
    a("L_bdone:\ns_mov_b64 exec, -1")
    a(f"v_lshlrev_b32 v21, 7, v1\nv_add_u32 v21, {XA}, v21\nv_add_u32 v22, s{sWV}, v19\nv_lshlrev_b32 v22, 2, v22\nv_add_u32 v22, {QI}, v22")
    a(f"s_mov_b32 s46, s{sWV}\ns_cmp_eq_u32 s46, 0\ns_cselect_b32 s48, 0x80000000, 0\nv_or_b32 v23, s48, v21")
    a("L_qloop:")
    a("v_cmpx_lt_u32 vcc, s46, v18\ns_cbranch_execz L_qdone")
    a("ds_write_b32 v22, v23\nv_mov_b32 v23, v21\nv_add_u32 v22, 32, v22\ns_add_u32 s46, s46, 8\ns_branch L_qloop")
    a("L_qdone:\ns_mov_b64 exec, -1")
    a("v_mov_b32 v24, 0x3fff\nv_mov_b32 v25, 0x7fffffe0")
    a(f"s_cmp_gt_u32 s{sWV}, 2\ns_cbranch_scc1 L_pad3")
    a(f"v_add_u32 v26, s{sWV}, v16\nv_lshlrev_b32 v27, 2, v18\nv_cmpx_lt_u32 vcc, v26, v27\nv_lshl_add_u32 v26, v26, 3, v20\nds_write_b64 v26, v[24:25]")
    a("s_branch L_paddone")
    a("L_pad3:")
    a(f"s_lshl_b32 s46, s{sG}, 3\ns_sub_u32 s46, s46, s47")
    a(f"s_cmp_eq_u32 s{sWV}, 3\ns_cbranch_scc0 L_pad4")
    a(f"s_lshl_b32 s46, s46, 2\ns_lshl_b32 s48, s47, 5\ns_add_u32 s48, s48, {LIST}\nv_cmpx_gt_u32 vcc, s46, v1\nv_lshl_add_u32 v26, v1, 3, s48\nds_write_b64 v26, v[24:25]")
    a("s_branch L_paddone")
    a("L_pad4:")
    a(f"s_cmp_eq_u32 s{sWV}, 4\ns_cbranch_scc0 L_paddone")
    a(f"s_lshl_b32 s48, s47, 2\ns_add_u32 s48, s48, {QI}\nv_mov_b32 v27, {XA}\nv_cmpx_gt_u32 vcc, s46, v1\nv_lshl_add_u32 v26, v1, 2, s48\nds_write_b32 v26, v27")
    a("L_paddone:\ns_mov_b64 exec, -1")
    a(f"s_lshr_b32 s46, s{sG}, 3\ns_and_b32 s47, s{sG}, 7\ns_mul_i32 s48, s46, s{sWV}\ns_min_u32 s49, s47, s{sWV}\ns_add_u32 s48, s48, s49")
    a(f"s_cmp_lt_u32 s{sWV}, s47\ns_addc_u32 s{sN}, s46, 0")
    a(f"s_lshl_b32 s46, s{sN}, 7\ns_lshl_b32 s47, s48, 8")
    a(f"v_mad_u32_u24 v{LPX}, v14, s46, v{CX}\nv_add_u32 v{LPX}, s47, v{LPX}")
    a(f"v_bfe_u32 v26, v1, 3, 1\nv_mad_u32_u24 v{LPE}, v26, s46, v{CE}\nv_add_u32 v{LPE}, s47, v{LPE}")
    a(f"s_lshl_b32 s46, s{sN}, 4\ns_lshl_b32 s47, s48, 5")
    a(f"v_mad_u32_u24 v{QP}, v14, s46, v{CQ}\nv_add_u32 v{QP}, s47, v{QP}")
    a("s_waitcnt lgkmcnt(0)")
    for k in range(RMAX):
        a(f"v_cmpx_lt_u32 vcc, {k}, v7")
        if k >= 4 and k % 2 == 0: a("s_cbranch_execz L_pdone")
        a(f"v_lshl_add_u32 v{CA+k}, v{RANK+k}, 3, v{CA+k}\nds_write_b64 v{CA+k}, {vr(PAIR+2*k,2)}")
    a("L_pdone:\ns_mov_b64 exec, -1")
    a("s_waitcnt lgkmcnt(0)\ns_barrier")
    stamp(a, opt, 4, 1)
    a(f"s_cmp_eq_u32 s{sN}, 0\ns_cbranch_scc1 L_rend")
    a.ext(list_reads(0))
    a(f"ds_read_b32 v{W[0]}, v{QP}")
    a.ext(dma_enable(0))
    a("s_waitcnt lgkmcnt(1)")
    for b in dma_group(0, 0): a.ext(b)
    a.ext(list_reads(1))
    a.ext(dma_enable(1))
    a("s_waitcnt lgkmcnt(3)")
    a(f"v_and_or_b32 v{XAA}, v{W[0]}, s{sMSK}, v{XAC}\nv_cmp_gt_i32 s[{sF[0]}:{sF[0]+1}], 0, v{W[0]}")
    a(f"ds_read_b64_tr_b16 {vr(XAB[0],2)}, v{XAA}\nds_read_b64_tr_b16 {vr(XAB[1],2)}, v{XAA} offset:64")
    a("s_waitcnt lgkmcnt(2)")
    for b in dma_group(1, 1): a.ext(b)
    a(f"s_or_b32 s{sFO[0]}, s{sF[0]}, s{sF[0]+1}")
    a(f"v_mov_b32_dpp v{T2}, v{W[0]} row_newbcast:0 row_mask:0xf bank_mask:0xf")
    a(f"v_mov_b32 v{AC[0]}, 0\nv_mov_b32 v{AC[1]}, 0\nv_and_b32 v{T2}, s{sMSK}, v{T2}")
    a(f"v_lshl_add_u32 v{CUR[0]}, v{T2}, 2, v{N8}\nv_lshl_add_u32 v{CUR[1]}, v{T2}, 2, v{N8}")
    a("s_waitcnt vmcnt(5)")
    stamp(a, opt, 5, 1)
    a(f"ds_read_b128 {vr(E,4)}, v{ER}")
    for s in range(4): a(f"ds_read_b128 {vr(X+4*s,4)}, v{AR+s}")
    g0 = gate_chain(0)
    a("s_waitcnt lgkmcnt(4)")
    a(g0[0]); a(g0[1])
    for s in range(4):
        a(f"s_waitcnt lgkmcnt({3-s})"); a(g0[2+s])
    a("s_nop 7\ns_nop 3")
    stubs = []
    s0f = slot0(0, True, stubs)
    s0 = [slot0(0, False, stubs), slot0(1, False, stubs)]
    s1 = [slot1(0, stubs), slot1(1, stubs)]
    dec = [f"s_sub_u32 s{sN}, s{sN}, 1", f"s_cmp_eq_u32 s{sN}, 0"]
    inc = [f"v_add_u32 v{LPX}, 256, v{LPX}", f"v_add_u32 v{LPE}, 256, v{LPE}", f"v_add_u32 v{QP}, 32, v{QP}"]
    dr = [bpart(1, 0, "d0", stubs), bpart(1, 1, "d1", stubs)]
    a.ext(s0f)
    a("s_branch L_s1_u0")
    a(".p2align 6\nL_u0:")
    a.ext(s0[0])
    a("L_s1_u0:")
    a.ext(s1[0]); a.ext(dec); a("s_cbranch_scc1 L_drain0")
    a.ext(s0[1]); a.ext(s1[1]); a.ext(inc); a.ext(dec); a("s_cbranch_scc0 L_u0")
    a.ext(dr[1]); a("s_branch L_flush")
    a("L_drain0:"); a.ext(dr[0])
    a("L_flush:")
    a(f"v_cvt_f64_f32 {vr(TMP,2)}, v{AC[0]}\nv_cvt_f64_f32 {vr(XW,2)}, v{AC[1]}")
    a(f"ds_add_f64 v{CUR[0]}, {vr(TMP,2)}\nds_add_f64 v{CUR[1]}, {vr(XW,2)} offset:256")
    bad = check(g0 + ["s_nop 7", "s_nop 3"] + s0f + ["s_branch x"] + s1[0] + dec + ["s_cbranch x"] + s0[1] + s1[1] + inc + dec + ["s_cbranch x"] + s0[0] + s1[0] + dec + ["s_cbranch x"] + dr[0], "loop")
    bad += check(s1[1] + inc + dec + ["s_cbranch x"] + dr[1], "drain1")
    assert bad == 0
    a("L_rend:")
    a("s_waitcnt vmcnt(0) lgkmcnt(0)")
    stamp(a, opt, 6, 1)
    a("s_barrier")
    a(f"s_add_u32 s{sRND}, s{sRND}, 1\ns_cmp_lt_u32 s{sRND}, s{sNR}\ns_cbranch_scc1 L_fb_round")
    a(f"s_cmp_eq_u32 s{sWV}, 7\ns_cbranch_scc1 L_fin")
    a(f"s_lshl_b32 s46, s{sWV}, 12\ns_add_u32 s46, s46, {ACC}\nv_add_u32 v2, s46, v10")
    for q in range(4): a(f"ds_read_b128 {vr(16+4*q,4)}, v2 offset:{1024*q}")
    a(f"s_lshl_b32 s46, s{sWV}, 18\ns_lshl_b32 s47, s{sB}, 7\ns_add_u32 s46, s46, s47\nv_lshlrev_b32 v3, 15, v14\nv_lshl_add_u32 v3, v15, 2, v3\nv_add_u32 v3, s46, v3")
    a(f"s_mov_b32 s46, {hex(f2u(-LOG2E))}\nv_add_u32 v4, 0x10000, v3\nv_add_u32 v5, 0x20000, v3\nv_add_u32 v6, 0x30000, v3")
    for q in range(4):
        a(f"s_waitcnt lgkmcnt({3-q})")
        z = 32 + 2*q; t = 40 + 2*q
        a(f"v_cvt_f32_f64 v{z}, {vr(16+4*q,2)}\nv_cvt_f32_f64 v{z+1}, {vr(18+4*q,2)}")
        a(f"v_mul_f32 v{t}, s46, v{z}\nv_mul_f32 v{t+1}, s46, v{z+1}")
        a(f"v_exp_f32 v{t}, v{t}\nv_exp_f32 v{t+1}, v{t+1}\ns_nop 0")
        a(f"v_add_f32 v{t}, 1.0, v{t}\nv_add_f32 v{t+1}, 1.0, v{t+1}")
        a(f"v_rcp_f32 v{t}, v{t}\nv_rcp_f32 v{t+1}, v{t+1}\ns_nop 0")
        a(f"v_mul_f32 v{t}, v{z}, v{t}\nv_mul_f32 v{t+1}, v{z+1}, v{t+1}")
        a(f"v_cvt_pk_bf16_f32 v{t}, v{t}, v{t+1}")
        a(f"buffer_store_dword v{t}, v{3+q}, s[24:27], 0 offen")
    a("L_fin:")
    if opt.get("ts"):
        a("s_waitcnt vmcnt(0)")
        stamp(a, opt, 7, 1)
        stamp_store(a, opt, 8, 1, 16, sWV, 8)
    a("s_endpgm")
    for st in stubs: a.ext(stub(*st))
    a("L_fb_enter:")
    a(f"ds_max_u32 v11, v3 offset:{MAXL}\ns_mov_b32 s{sMODE}, 1\ns_waitcnt lgkmcnt(0)\ns_barrier")
    a(f"ds_read_b32 v16, v11 offset:{MAXL}\ns_waitcnt lgkmcnt(0)\nv_readfirstlane_b32 s46, v16")
    a(f"s_add_u32 s46, s46, {2*FBJ-1}\ns_mul_i32 s46, s46, {(65536 + 2*FBJ - 1)//(2*FBJ)}\ns_lshr_b32 s{sNR}, s46, 16")
    a("L_fb_round:")
    a(f"s_cmp_lg_u32 s{sWV}, 0\ns_cbranch_scc1 L_fb_nz\nds_write_b32 v12, v11 offset:{CNT}\nL_fb_nz:")
    a(f"s_mul_i32 s46, s{sRND}, {2*FBJ}\nv_mul_u32_u24 v6, {FBJ}, v9\nv_add_u32 v6, s46, v6\nv_sub_u32 v7, v3, v6\nv_max_i32 v7, 0, v7\nv_min_u32 v7, {FBJ}, v7\nv_add_u32 v6, v6, v5")
    load_records(a, "r", (FBJ + 3) // 4)
    a("s_waitcnt vmcnt(0) lgkmcnt(0)\ns_barrier\ns_branch L_count")
    a("K2_end:\ns_endpgm")
    return a.L

def desc(name, vg, sg):
    return f""".amdhsa_kernel {name}
  .amdhsa_next_free_vgpr {vg}
  .amdhsa_next_free_sgpr {sg}
  .amdhsa_accum_offset {(vg+3)//4*4}
  .amdhsa_group_segment_fixed_size 0
  .amdhsa_kernarg_size 80
  .amdhsa_user_sgpr_count 2
  .amdhsa_user_sgpr_kernarg_segment_ptr 1
  .amdhsa_system_sgpr_workgroup_id_x 1
  .amdhsa_float_denorm_mode_32 3
.end_amdhsa_kernel"""

def gen(opt):
    KN = "gather_scatter__edge_featured_mpnn_egc__graph_kernel"
    hdr = open("gather_scatter__edge_featured_mpnn_egc__graph.s.ref").read().split("\n")
    hdr = [l for l in hdr if l.startswith(";") and "@launch" not in l and "Override launch" not in l and "grid=ceil" not in l]
    out = hdr + [f"; @launch kernel=bin_kernel grid=({NCH+3},1,1) block=(832,1,1) lds={K1_LDS}",
                 f"; @launch kernel={KN} grid=(256,1,1) block=(512,1,1) lds={K2_LDS}",
                 '.amdgcn_target "amdgcn-amd-amdhsa--gfx950"', ".text"]
    k1 = gen_k1(opt); k2 = gen_k2(opt)
    check(k1, "k1-linear"); check(k2, "k2-linear")
    fmt = lambda L: [l if (l.endswith(":") or l.startswith(".")) else "    " + l for l in L]
    out += fmt(k1) + fmt(k2)
    out += ['.section .rodata,"a"', ".p2align 6", desc("bin_kernel", 40, 102 if opt.get("ts") else 40), ".p2align 6", desc(KN, 256, 102 if opt.get("ts") else 64)]
    return "\n".join(out) + "\n"

if __name__ == "__main__":
    opt = {}
    outp = sys.argv[1]
    for kv in sys.argv[2:]:
        k, v = kv.split("="); opt[k] = int(v)
    open(outp, "w").write(gen(opt))
```

```python
import sys
from asmlib import *

N = 12500; NE = 800000; CH = 3200; NCH = 250
REC_OFF = 0; TAB_OFF = 3200000; FRAG_OFF = 3456000
TS_OFF = 8 << 20
LOG2E = 1.4426950408889634
import struct
def f2u(x): return struct.unpack("<I", struct.pack("<f", x))[0]

class Asm:
    def __init__(self): self.L = []
    def __call__(self, s):
        for l in s.split("\n"):
            l = l.strip()
            if l: self.L.append(l)
    def ext(self, lst):
        for s in lst: self(s)

def srd(a, d, base, size, off=0):
    if off:
        a(f"s_add_u32 s{d}, s{base}, {off}\ns_addc_u32 s{d+1}, s{base+1}, 0")
    elif d != base:
        a(f"s_mov_b32 s{d}, s{base}\ns_mov_b32 s{d+1}, s{base+1}")
    a(f"s_mov_b32 s{d+2}, {size}\ns_mov_b32 s{d+3}, 0x20000")

def dpp_scan(a, v):
    for sh in (1, 2, 4, 8):
        a(f"s_nop 1\nv_add_u32_dpp v{v}, v{v}, v{v} row_shr:{sh} row_mask:0xf bank_mask:0xf bound_ctrl:1")
    a(f"s_nop 1\nv_add_u32_dpp v{v}, v{v}, v{v} row_bcast:15 row_mask:0xa bank_mask:0xf")
    a(f"s_nop 1\nv_add_u32_dpp v{v}, v{v}, v{v} row_bcast:31 row_mask:0xc bank_mask:0xf")

def stamp(a, opt, idx, kern):
    if opt.get("ts"):
        a(f"s_memrealtime s[{60+2*idx}:{61+2*idx}]")

def stamp_store(a, opt, n, kern, wsreg, wavereg, nw):
    if not opt.get("ts"): return
    a("s_waitcnt lgkmcnt(0)")
    if opt.get("ts") == 2:
        a("s_load_dwordx2 s[92:93], s[0:1], 64\ns_waitcnt lgkmcnt(0)")
        if not kern: a("s_add_u32 s92, s92, 512\ns_addc_u32 s93, s93, 0")
        a("s_mov_b32 s94, 256\ns_mov_b32 s95, 0x20000")
        a(f"s_cmp_lg_u32 s{wavereg}, 0\ns_cbranch_scc1 L_ts_skip{kern}")
        a("s_mov_b64 exec, 1")
        base = 0 if kern == 0 else 6
        a(f"s_not_b32 s96, s60\nv_mov_b32 v2, s96\nv_mov_b32 v3, {4*base}\nbuffer_atomic_umax v2, v3, s[92:95], 0 offen")
        for i in range(n):
            a(f"v_mov_b32 v2, s{60+2*i}\nv_mov_b32 v3, {4*(base+1+i)}\nbuffer_atomic_umax v2, v3, s[92:95], 0 offen")
        a(f"L_ts_skip{kern}:")
        a("s_mov_b64 exec, -1")
        return
    a(f"s_add_u32 s92, s{wsreg}, {TS_OFF + kern*(1<<20)}\ns_addc_u32 s93, s{wsreg+1}, 0\ns_mov_b32 s94, 0x100000\ns_mov_b32 s95, 0x20000")
    a(f"s_mul_i32 s96, s2, {nw}\ns_add_u32 s96, s96, s{wavereg}\ns_lshl_b32 s96, s96, 6")
    a("s_mov_b64 exec, 1")
    for i in range(n):
        a(f"v_mov_b32 v2, s{60+2*i}\nv_mov_b32 v3, {4*i}\nbuffer_store_dword v2, v3, s[92:95], s96 offen")
    a("s_mov_b64 exec, -1")

K1_CNT = 0; K1_BASE = 1024; K1_SRT = 2048; K1_LDS = 2048 + CH * 4

def gen_k1(opt):
    a = Asm()
    a(".globl bin_kernel\n.p2align 8\n.type bin_kernel,@function\nbin_kernel:")
    a(f"s_cmp_ge_u32 s2, {NCH+3}\ns_cbranch_scc1 K1_end")
    stamp(a, opt, 0, 0)
    a(f"s_cmp_ge_u32 s2, {NCH}\ns_cbranch_scc1 K1_weights")
    a("s_load_dwordx4 s[4:7], s[0:1], 16")
    a("s_load_dwordx2 s[16:17], s[0:1], 72    ; ws")
    a("v_lshrrev_b32 v1, 6, v0")
    a("v_lshlrev_b32 v2, 4, v0                ; t*16")
    a("v_readfirstlane_b32 s28, v1            ; wave")
    a("v_and_b32 v1, 63, v0                   ; lane")
    a(f"s_mul_i32 s3, s2, {CH*4}")
    a("v_mov_b32 v20, 0\nv_mov_b32 v21, 0\nv_mov_b32 v22, 0\nv_mov_b32 v23, 0\nv_mov_b32 v24, 1")
    a("v_lshlrev_b32 v3, 4, v1                ; lane*16")
    a(f"v_cmp_gt_u32 s[30:31], {CH//4 - 768}, v1")
    a("s_cmp_eq_u32 s28, 12\ns_cselect_b64 s[30:31], s[30:31], -1")
    a("s_waitcnt lgkmcnt(0)")
    srd(a, 8, 6, NE*4)
    srd(a, 4, 4, NE*4)
    a("s_mov_b64 exec, s[30:31]")
    a("buffer_load_dwordx4 v[4:7], v2, s[8:11], s3 offen\nbuffer_load_dwordx4 v[8:11], v2, s[4:7], s3 offen")
    a("s_mov_b64 exec, -1")
    srd(a, 20, 16, NCH*1024, TAB_OFF)
    srd(a, 16, 16, NE*4)
    a("s_cmp_lg_u32 s28, 0\ns_cbranch_scc1 K1_nozero")
    a(f"ds_write_b128 v3, v[20:23] offset:{K1_CNT}")
    a("s_waitcnt lgkmcnt(0)")
    a("K1_nozero:")
    a("s_barrier")
    a("s_mov_b64 exec, s[30:31]")
    a("v_lshlrev_b32 v25, 2, v0")
    a("s_mov_b32 s29, 0xfc000000")
    a("s_waitcnt vmcnt(1)")
    stamp(a, opt, 1, 0)
    for i in range(4):
        a(f"v_lshlrev_b32_sdwa v{12+i}, 2, v{4+i} dst_sel:DWORD dst_unused:UNUSED_PAD src0_sel:DWORD src1_sel:BYTE_0")
        a(f"ds_add_rtn_u32 v{16+i}, v{12+i}, v24 offset:{K1_CNT}")
    for i in range(4):
        a(f"v_lshlrev_b32 v{4+i}, 18, v{4+i}")
        if i: a(f"v_add_u32 v26, {i}, v25")
        a(f"v_and_or_b32 v{4+i}, v{4+i}, s29, v{26 if i else 25}")
    a("s_waitcnt vmcnt(0)")
    for i in range(4):
        a(f"v_lshl_or_b32 v{4+i}, v{8+i}, 12, v{4+i}")
    a("s_mov_b64 exec, -1")
    a("s_waitcnt lgkmcnt(0)\ns_barrier")
    stamp(a, opt, 2, 0)
    a(f"ds_read_b128 v[20:23], v3 offset:{K1_CNT}")
    a("s_waitcnt lgkmcnt(0)")
    a("v_add_u32 v9, v20, v21\nv_add_u32 v10, v9, v22\nv_add_u32 v11, v10, v23\nv_mov_b32 v26, v11")
    dpp_scan(a, 26)
    a("v_sub_u32 v26, v26, v11")
    a("v_add_u32 v27, v26, v20\nv_add_u32 v28, v26, v9\nv_add_u32 v29, v26, v10")
    for i in range(4):
        a(f"v_lshlrev_b32 v{32+i}, 2, v{26+i}")
    a(f"ds_write_b128 v3, v[32:35] offset:{K1_BASE}")
    a("s_cmp_lg_u32 s28, 0\ns_cbranch_scc1 K1_notab")
    for i in range(4):
        a(f"v_lshl_or_b32 v{36+i}, v{20+i}, 16, v{26+i}")
    a("s_lshl_b32 s33, s2, 10")
    a("buffer_store_dwordx4 v[36:39], v3, s[20:23], s33 offen")
    a("K1_notab:")
    a("s_mov_b64 exec, s[30:31]")
    for i in range(4):
        a(f"ds_read_b32 v{12+i}, v{12+i} offset:{K1_BASE}")
    for i in range(4):
        a(f"s_waitcnt lgkmcnt({3-i if i < 1 else 3})")
        a(f"v_lshl_add_u32 v{12+i}, v{16+i}, 2, v{12+i}")
        a(f"ds_write_b32 v{12+i}, v{4+i} offset:{K1_SRT}")
    a("s_waitcnt lgkmcnt(0)\ns_barrier")
    stamp(a, opt, 3, 0)
    a(f"ds_read_b128 v[4:7], v2 offset:{K1_SRT}")
    a("s_waitcnt lgkmcnt(0)")
    a("buffer_store_dwordx4 v[4:7], v2, s[16:19], s3 offen")
    a("s_mov_b64 exec, -1")
    if opt.get("ts"):
        a("s_waitcnt vmcnt(0)")
        stamp(a, opt, 4, 0)
        stamp_store(a, opt, 5, 0, 16, 28, 13)
    a("s_endpgm")
    a("K1_weights:")
    a("s_load_dwordx4 s[4:7], s[0:1], 32      ; u_w, v_w")
    a("s_load_dwordx2 s[8:9], s[0:1], 48      ; g_w")
    a("s_load_dwordx2 s[16:17], s[0:1], 72    ; ws")
    a("v_lshrrev_b32 v1, 6, v0\ns_nop 0\nv_readfirstlane_b32 s28, v1")
    a(f"s_sub_u32 s3, s2, {NCH}\ns_mul_i32 s3, s3, 13\ns_add_u32 s3, s3, s28")
    a("s_cmp_ge_u32 s3, 34\ns_cbranch_scc1 K1_end")
    a("v_and_b32 v1, 63, v0")
    a("s_waitcnt lgkmcnt(0)")
    a(f"s_mov_b32 s12, s8\ns_mov_b32 s13, s9\ns_mov_b32 s14, {144*128}\ns_mov_b32 s15, 0x20000")
    a(f"s_mov_b32 s29, 64\ns_mov_b32 s30, s3\ns_mov_b32 s31, {hex(f2u(-LOG2E))}")
    a("s_cmp_lt_u32 s3, 8\ns_cbranch_scc1 K1_wgo")
    a("s_mov_b32 s29, 128\ns_sub_u32 s30, s3, 16\ns_lshl_b32 s30, s30, 2")
    a("s_and_b32 s32, s3, 0xfe\ns_cmp_eq_u32 s32, 16\ns_cbranch_scc1 K1_wgo")
    a("s_mov_b32 s29, 0\ns_mov_b32 s31, 1.0\ns_sub_u32 s30, s3, 18\ns_cmp_lt_u32 s30, 8\ns_cbranch_scc1 K1_wgo")
    a(f"s_mov_b32 s14, {64*128}")
    a("s_mov_b32 s12, s6\ns_mov_b32 s13, s7\ns_sub_u32 s30, s3, 8\ns_cmp_lt_u32 s3, 16\ns_cbranch_scc1 K1_wgo")
    a("s_mov_b32 s12, s4\ns_mov_b32 s13, s5\ns_sub_u32 s30, s3, 26")
    a("K1_wgo:")
    a("s_and_b32 s32, s30, 3\ns_lshl_b32 s32, s32, 4\ns_add_u32 s32, s32, s29\ns_lshl_b32 s32, s32, 7   ; (row0+16s)*128")
    a("s_lshr_b32 s33, s30, 2\ns_lshl_b32 s33, s33, 6\ns_add_u32 s32, s32, s33                        ; + 64*T")
    a("v_lshrrev_b32 v2, 5, v1\nv_lshlrev_b32 v2, 10, v2\nv_and_b32 v3, 31, v1\nv_lshl_add_u32 v2, v3, 1, v2")
    for q in range(8):
        a(f"buffer_load_ushort v{4+q}, v2, s[12:15], s32 offen offset:{128*q}")
    srd(a, 16, 16, 34*1024, FRAG_OFF)
    a("s_lshl_b32 s33, s3, 10\nv_lshlrev_b32 v3, 4, v1")
    a("s_waitcnt vmcnt(0)")
    for q in range(8):
        a(f"v_lshlrev_b32 v{4+q}, 16, v{4+q}\nv_mul_f32 v{4+q}, s31, v{4+q}")
    for q in range(4):
        a(f"v_cvt_pk_bf16_f32 v{12+q}, v{4+2*q}, v{5+2*q}")
    a("buffer_store_dwordx4 v[12:15], v3, s[16:19], s33 offen")
    a("K1_end:\ns_endpgm")
    return a.L

CNT = 0; BASES = 256; FLAG = 512; MAXL = 516
STG = 1024; WSTG = 10240; BUF = 5120
LIST = STG + 8 * WSTG; CAPG = 128; CAP = CAPG * 32
QI = LIST + CAP * 8
XA = (QI + CAP + 64 + 127) // 128 * 128
ACC = XA + 52 * 128
K2_LDS = ACC + 64 * 512
assert K2_LDS <= 163840
RMAX = 20
FBJ = 6

G = [16, 32]; R = [48, 64]; H = [80, 96]
X = 112; E = 128; XAB = [132, 136]; SEL = 140; ONE = 144
WB = 148; WV = 180; WC = 212
AC = [220, 221]; CUR = [222, 223]; TMP = 224; T2 = 226
XW = 228; EW = 232; W = [233, 234]; XAA = 235
COL = 236; EH = 240; XAC = 241; N8 = 242; AR = 243; ER = 247; LPX = 248; LPE = 249; QP = 250
CX = 251; CE = 252; CQ = 253
REC = 16; RANK = 36; CA = 56; PAIR = 76
sF = [32, 36]; sFO = [34, 35]
sWV = 28; sB = 29; sN = 30; sSTG = 38; sRND = 39; sMODE = 40; sXSZ = 41; sESZ = 42; sMSK = 43; sFC = 44; sG = 45; sNR = 50
MF = "v_mfma_f32_32x32x16_bf16"
def mf(d, A, B, c): return f"{MF} {vr(d,16)}, {vr(A,4)}, {vr(B,4)}, {c if c == '0' else vr(c,16)}"

def weave(val, extra):
    out = []
    ex = sorted(extra, key=lambda t: t[0])
    k = 0
    for i, x in enumerate(val + [None]):
        while k < len(ex) and ex[k][0] <= i:
            out += ex[k][1]; k += 1
        if x is not None: out.append(x)
    assert k == len(ex)
    return out

def dma_group(p, ofs):
    b = []
    for k in range(4):
        b.append([f"v_lshl_or_b32 v{XW+k}, v{XW+k}, 7, v{COL+k}", f"s_add_u32 m0, s{sSTG}, {p*BUF + k*1024}", "s_nop 0",
                  f"buffer_load_dwordx4 v{XW+k}, s[8:11], 0 offen lds"])
    b.append([f"v_or_b32 v{EW}, v{EW}, v{EH}", f"s_add_u32 m0, s{sSTG}, {p*BUF + 4096}", "s_nop 0",
              f"buffer_load_dwordx4 v{EW}, s[12:15], 0 offen lds"])
    return b

def list_reads(ofs):
    d = ofs * 32
    return [f"ds_read2_b32 {vr(XW,2)}, v{LPX} offset0:{d} offset1:{d+2}",
            f"ds_read2_b32 {vr(XW+2,2)}, v{LPX} offset0:{d+4} offset1:{d+6}",
            f"ds_read_b32 v{EW}, v{LPE} offset:{ofs*128+4}"]

def dma_enable(thr):
    return [f"s_cmp_gt_u32 s{sN}, {thr}", f"s_cselect_b32 s10, s{sXSZ}, 0", f"s_cselect_b32 s14, s{sESZ}, 0"]

def bpart(T, par, tag, stubs):
    r, h = R[T], H[T]
    rc = lambda q: [f"v_rcp_f32 v{r+4*q+i}, v{r+4*q+i}" for i in range(4)]
    def fm(q):
        lab = f"{tag}_{q}"
        stubs.append((lab, T, par, q))
        return [f"s_bitcmp1_b32 s{sFO[par]}, {4*q}\ns_cbranch_scc1 L_fl_{lab}\nL_bk_{lab}:\nv_fmac_f32 v{AC[T]}, v{r+4*q}, v{h+4*q}"] + \
               [f"v_fmac_f32 v{AC[T]}, v{r+4*q+i}, v{h+4*q+i}" for i in range(1, 4)]
    return rc(0) + rc(1) + fm(0) + rc(2) + fm(1) + rc(3) + fm(2) + fm(3)

def stub(lab, T, par, q):
    return [f"L_fl_{lab}:",
            f"s_bitcmp1_b32 s{sF[par]}, {4*q}", "s_cselect_b32 exec_lo, -1, 0",
            f"s_bitcmp1_b32 s{sF[par]+1}, {4*q}", "s_cselect_b32 exec_hi, -1, 0",
            f"v_cvt_f64_f32 {vr(TMP,2)}, v{AC[T]}",
            f"v_mov_b32_dpp v{T2}, v{W[par]} row_newbcast:{4*q} row_mask:0xf bank_mask:0xf",
            f"ds_add_f64 v{CUR[T]}, {vr(TMP,2)} offset:{256*T}",
            f"v_mov_b32 v{AC[T]}, 0",
            f"v_and_b32 v{T2}, s{sMSK}, v{T2}",
            f"v_lshl_add_u32 v{CUR[T]}, v{T2}, 2, v{N8}",
            "s_mov_b64 exec, -1", f"s_branch L_bk_{lab}"]

def gate_chain(T):
    g = G[T]
    return [mf(g, SEL, XAB[T], '0'), mf(g, E, WC+4*T, g)] + [mf(g, X+4*s, WB+16*T+4*s, g) for s in range(4)]
def hv_chain(T):
    return [mf(H[T], X+4*s, WV+16*T+4*s, '0' if s == 0 else H[T]) for s in range(4)]

def slot0(u, first, stubs):
    ex = [f"v_exp_f32 v{G[0]+i}, v{G[0]+i}" for i in range(16)]
    g, h = gate_chain(1), hv_chain(0)
    m1 = mf(R[0], ONE, ONE, G[0])
    d = dma_group(u, u + 2)
    wread = [f"ds_read_b32 v{W[u^1]}, v{QP} offset:{(u+1)*16}"]
    if first:
        extra = [(0, list_reads(u+2) + dma_enable(2) + [g[0]]), (2, [h[0]]), (4, [g[1]]), (6, [h[1]]), (8, [g[2], "s_waitcnt lgkmcnt(0)"] + d[0]),
                 (10, [h[2]] + d[1]), (12, [g[3]] + d[2]), (14, [h[3]] + d[3]), (16, [g[4]] + d[4] + [m1, g[5]] + wread + ["s_nop 7"])]
        return weave(ex, extra)
    val = ex + bpart(1, u ^ 1, f"a{u}", stubs)
    extra = [(0, list_reads(u+2) + dma_enable(2) + [g[0]]), (3, [h[0]]), (7, [g[1]]), (8, ["s_waitcnt lgkmcnt(0)"] + d[0]), (10, [h[1]]),
             (13, [g[2]]), (14, d[1]), (18, [m1]), (20, d[2]), (21, [g[3]]), (25, [h[2]]), (26, d[3]), (29, [g[4]]), (32, d[4]), (33, [h[3]]), (37, [g[5]]),
             (48, wread)]
    return weave(val, extra)

def slot1(u, stubs):
    ex = [f"v_exp_f32 v{G[1]+i}, v{G[1]+i}" for i in range(16)]
    val = ex + bpart(0, u, f"b{u}", stubs)
    g, h = gate_chain(0), hv_chain(1)
    m1 = mf(R[1], ONE, ONE, G[1])
    p = u ^ 1
    xr = lambda s: f"ds_read_b128 {vr(X+4*s,4)}, v{AR+s} offset:{p*BUF}"
    extra = [(0, ["s_waitcnt vmcnt(5)", f"ds_read_b128 {vr(E,4)}, v{ER} offset:{p*BUF}", h[0], xr(0)]),
             (2, ["s_waitcnt lgkmcnt(2)", f"v_and_or_b32 v{XAA}, v{W[p]}, s{sMSK}, v{XAC}", f"v_cmp_gt_i32 s[{sF[p]}:{sF[p]+1}], 0, v{W[p]}",
                  f"ds_read_b64_tr_b16 {vr(XAB[0],2)}, v{XAA}", f"ds_read_b64_tr_b16 {vr(XAB[1],2)}, v{XAA} offset:64"]),
             (4, [h[1], xr(1)]), (8, [h[2], xr(2), f"s_or_b32 s{sFO[p]}, s{sF[p]}, s{sF[p]+1}"]), (12, [h[3], xr(3)]),
             (15, ["s_waitcnt lgkmcnt(4)", g[0]]), (18, [m1]), (21, [g[1]]), (25, [g[2]]),
             (29, ["s_waitcnt lgkmcnt(2)", g[3]]), (33, ["s_waitcnt lgkmcnt(1)", g[4]]), (37, ["s_waitcnt lgkmcnt(0)", g[5]])]
    return weave(val, extra)

def load_records(a, tag, nld):
    a("v_lshlrev_b32 v8, 2, v6")
    for k in range(nld):
        a(f"v_cmpx_lt_u32 vcc, {4*k}, v7")
        a(f"s_cbranch_execz L_ld_{tag}")
        a(f"buffer_load_dwordx4 {vr(REC+4*k,4)}, v8, s[16:19], 0 offen offset:{16*k}")
        if k == 2: a("s_mov_b32 s51, 1")
    a(f"L_ld_{tag}:\ns_mov_b64 exec, -1")

def gen_k2(opt):
    a = Asm()
    KN = "gather_scatter__edge_featured_mpnn_egc__graph_kernel"
    a(f".globl {KN}\n.p2align 8\n.type {KN},@function\n{KN}:")
    a("s_cmp_ge_u32 s2, 256\ns_cbranch_scc1 K2_end")
    stamp(a, opt, 0, 1)
    a("s_load_dwordx4 s[4:7], s[0:1], 0       ; x, e_attr")
    a("s_load_dwordx2 s[24:25], s[0:1], 56    ; out")
    a("s_load_dwordx2 s[16:17], s[0:1], 72    ; ws")
    a("v_lshrrev_b32 v2, 6, v0\nv_and_b32 v1, 63, v0")
    a(f"v_readfirstlane_b32 s{sWV}, v2")
    a(f"s_and_b32 s3, s2, 7\ns_lshl_b32 s3, s3, 5\ns_lshr_b32 s{sB}, s2, 3\ns_or_b32 s{sB}, s{sB}, s3      ; bin")
    a(f"v_lshrrev_b32 v9, 1, v0                ; chunk")
    a(f"s_lshl_b32 s3, s{sB}, 2\nv_lshl_add_u32 v2, v9, 10, s3")
    a(f"s_lshl_b32 s31, s{sWV}, 2\nv_lshrrev_b32 v3, 4, v1\nv_add_u32 v3, s31, v3\nv_xor_b32 v3, v3, v1\nv_and_b32 v3, 7, v3\nv_lshlrev_b32 v3, 4, v3")
    a(f"v_lshrrev_b32 v4, 3, v0\nv_lshl_add_u32 v3, v4, 15, v3\ns_lshl_b32 s3, s{sB}, 7\nv_add_u32 v3, s3, v3")
    a("v_lshlrev_b32 v10, 4, v1                ; lane*16")
    a(f"s_lshr_b32 s46, s{sWV}, 1\ns_lshl_b32 s46, s46, 12\ns_add_u32 s46, s46, {FRAG_OFF + 18*1024}")
    a(f"s_lshl_b32 s47, s{sWV}, 10\ns_add_u32 m0, s47, {STG}")
    a("s_waitcnt lgkmcnt(0)")
    srd(a, 20, 16, NCH*1024, TAB_OFF)
    a("buffer_load_dword v2, v2, s[20:23], 0 offen")
    srd(a, 12, 6, NE*32)
    srd(a, 4, 4, N*128)
    a("buffer_load_dwordx4 v3, s[4:7], 0 offen lds")
    srd(a, 52, 16, FRAG_OFF + 34*1024)
    for s in range(4):
        a(f"buffer_load_dwordx4 {vr(96+4*s,4)}, v10, s[52:55], s46 offen offset:{1024*s}")
    srd(a, 8, 4, N*128)
    srd(a, 16, 16, NE*4)
    srd(a, 24, 24, N*128)
    a(f"s_mov_b32 s{sXSZ}, {N*128}\ns_mov_b32 s{sESZ}, {NE*32}\ns_mov_b32 s{sMSK}, 0x3ff80\ns_mov_b32 s{sFC}, 0xfc")
    a(f"s_mov_b32 s{sMODE}, 0\ns_mov_b32 s{sRND}, 0\ns_mov_b32 s{sNR}, 1")
    a(f"s_mul_i32 s{sSTG}, s{sWV}, {WSTG}\ns_add_u32 s{sSTG}, s{sSTG}, {STG}")
    a("v_mov_b32 v11, 0\nv_lshlrev_b32 v12, 2, v1\nv_mov_b32 v13, 1")
    a(f"s_cmp_lg_u32 s{sWV}, 0\ns_cbranch_scc1 L_nz")
    a(f"ds_write_b32 v12, v11 offset:{CNT}\nds_write_b32 v12, v11 offset:{FLAG}")
    a("L_nz:")
    a("v_lshrrev_b32 v14, 5, v1                ; lane>>5")
    a("v_and_b32 v15, 31, v1                   ; m / n")
    a("v_and_b32 v4, 7, v1\nv_lshlrev_b32 v5, 2, v14\nv_xor_b32 v4, v4, v5\nv_lshlrev_b32 v4, 4, v4")
    for k in range(4): a(f"v_xor_b32 v{COL+k}, {16*k}, v4")
    a(f"v_and_b32 v4, 1, v1\nv_xor_b32 v4, v4, v14\nv_lshlrev_b32 v{EH}, 4, v4")
    a(f"v_bfe_u32 v4, v1, 4, 1\nv_lshlrev_b32 v4, 5, v4\nv_and_b32 v5, 3, v1\nv_lshl_add_u32 v{XAC}, v5, 3, v4")
    a(f"v_lshlrev_b32 v4, 3, v15\nv_add_u32 v{N8}, {hex((ACC - 4*XA) & 0xffffffff)}, v4")
    a("v_and_b32 v4, 3, v15\nv_lshlrev_b32 v4, 3, v4\nv_and_b32 v5, 4, v15\nv_or_b32 v4, v4, v5\nv_lshrrev_b32 v5, 3, v15\nv_or_b32 v4, v4, v5")
    a(f"v_lshlrev_b32 v4, 7, v4\nv_add_u32 v4, s{sSTG}, v4")
    a("v_and_b32 v5, 7, v15\nv_xor_b32 v5, v5, v14\nv_lshlrev_b32 v5, 4, v5")
    for s in range(4): a(f"v_xor_b32 v6, {32*s}, v5\nv_add_u32 v{AR+s}, v4, v6")
    a(f"v_lshrrev_b32 v4, 4, v15\nv_xor_b32 v4, v4, v14\nv_lshlrev_b32 v4, 4, v4\nv_lshl_add_u32 v4, v15, 5, v4\nv_add_u32 v4, s{sSTG}, v4\nv_add_u32 v{ER}, 4096, v4")
    a(f"v_bfe_u32 v4, v1, 3, 2\nv_lshlrev_b32 v4, 5, v4\nv_add_u32 v{CX}, {LIST}, v4")
    a(f"v_lshrrev_b32 v4, 4, v1\nv_lshlrev_b32 v4, 2, v4\nv_bfe_u32 v5, v1, 1, 2\nv_add_lshl_u32 v4, v4, v5, 3\nv_add_u32 v{CE}, {LIST}, v4")
    a(f"v_bfe_u32 v4, v1, 2, 2\nv_lshlrev_b32 v4, 2, v4\nv_add_u32 v{CQ}, {QI}, v4")
    a("v_bfe_u32 v4, v15, 2, 1\nv_cmp_eq_u32 vcc, v4, v14\nv_bfe_u32 v5, v15, 3, 1\nv_lshlrev_b32 v5, 4, v5\nv_mov_b32 v6, 0x3f80\nv_lshlrev_b32 v6, v5, v6")
    a("v_cndmask_b32 v6, 0, v6, vcc\nv_cmp_gt_u32 vcc, 16, v15\ns_nop 1")
    a(f"v_cndmask_b32 v{SEL}, 0, v6, vcc\nv_cndmask_b32 v{SEL+1}, v6, v11, vcc\nv_mov_b32 v{SEL+2}, 0\nv_mov_b32 v{SEL+3}, 0")
    for i in range(4): a(f"v_mov_b32 v{ONE+i}, 0x3e803e80")
    for t in range(2): a(f"v_mov_b32 v{XAB[t]+2}, 0\nv_mov_b32 v{XAB[t]+3}, 0")
    a(f"v_mul_u32_u24 v4, {CH}, v9")
    a("v_and_b32 v9, 1, v0")
    a("s_waitcnt vmcnt(5)")
    stamp(a, opt, 1, 1)
    a("v_lshrrev_b32 v3, 16, v2")
    a("v_and_b32 v5, 0xffff, v2\nv_add_u32 v5, v5, v4")
    a("v_add_u32 v6, 1, v3\nv_lshrrev_b32 v6, 1, v6\nv_cmp_eq_u32 vcc, 1, v9\nv_sub_u32 v7, v3, v6")
    a(f"s_nop 0\nv_cndmask_b32 v7, v6, v7, vcc\nv_cndmask_b32 v6, 0, v6, vcc\nv_min_u32 v7, {RMAX}, v7\nv_add_u32 v6, v6, v5")
    a("s_mov_b32 s51, 0")
    load_records(a, "f", RMAX // 4)
    for i in range(18):
        if i % 4 == 0: a(f"s_mov_b32 s46, {FRAG_OFF + i*1024}")
        a(f"buffer_load_dwordx4 {vr(WB+4*i,4)}, v10, s[52:55], s46 offen offset:{1024*(i%4)}")
    a("s_cmp_eq_u32 s51, 1\ns_cbranch_scc1 L_w3\ns_waitcnt vmcnt(18)\nL_w3:\ns_waitcnt vmcnt(21) lgkmcnt(0)")
    a("s_barrier")
    a(f"v_cmp_lt_u32 vcc, {2*RMAX}, v3\ns_cbranch_vccz L_noflag")
    a(f"ds_write_b32 v11, v13 offset:{FLAG}")
    a("L_noflag:")
    a(f"s_and_b32 s46, s{sWV}, 1                ; M tile\ns_bfe_u32 s47, s{sWV}, 0x10001          ; N tile")
    a("v_lshrrev_b32 v8, 1, v15\nv_and_b32 v8, 7, v8\nv_xor_b32 v8, v8, v14\nv_lshlrev_b32 v8, 4, v8\nv_lshl_add_u32 v8, v15, 7, v8")
    a(f"s_lshl_b32 s48, s46, 12\ns_add_u32 s48, s48, {STG}")
    for s in range(4):
        a(f"v_xor_b32 v2, {32*s}, v8\nv_add_u32 v2, s48, v2\nds_read_b128 {vr(X+4*s,4)}, v2")
    D = 76
    for s in range(4):
        a(f"s_waitcnt lgkmcnt({3-s})")
        a(mf(D, X+4*s, 96+4*s, '0' if s == 0 else D))
    a(f"s_lshl_b32 s48, s46, 5\nv_lshl_add_u32 v2, v14, 2, s48")
    a(f"s_cmp_ge_u32 s{sWV}, 4\ns_cbranch_scc1 L_xu")
    a(f"s_lshl_b32 s48, s47, 6\ns_add_u32 s48, s48, {XA}\nv_lshl_add_u32 v2, v2, 7, s48\nv_lshl_add_u32 v2, v15, 1, v2")
    a(f"s_mov_b32 s48, {hex(f2u(-LOG2E))}\ns_nop 4")
    for i in range(4):
        if i == 2: a("s_cmp_eq_u32 s46, 0\ns_cselect_b32 exec_hi, -1, 0")
        if i == 3: a("s_cbranch_scc0 L_xdone")
        for j in range(4): a(f"v_mul_f32 v{D+4*i+j}, s48, v{D+4*i+j}")
        for j in (0, 2):
            a(f"v_cvt_pk_bf16_f32 v{D+4*i+j}, v{D+4*i+j}, v{D+4*i+j+1}")
            a(f"ds_write_b16 v2, v{D+4*i+j} offset:{(8*i+j)*128}\nds_write_b16_d16_hi v2, v{D+4*i+j} offset:{(8*i+j+1)*128}")
    a("s_branch L_xdone")
    a("L_xu:")
    a(f"s_lshl_b32 s48, s47, 8\ns_add_u32 s48, s48, {ACC}\nv_lshl_add_u32 v2, v2, 9, s48\nv_lshl_add_u32 v2, v15, 3, v2\ns_nop 5")
    for i in range(4):
        if i == 2: a("s_cmp_eq_u32 s46, 0\ns_cselect_b32 exec_hi, -1, 0")
        if i == 3: a("s_cbranch_scc0 L_xdone")
        for j in range(4):
            a(f"v_cvt_f64_f32 {vr(96+2*j,2)}, v{D+4*i+j}\nds_write_b64 v2, {vr(96+2*j,2)} offset:{(8*i+j)*512}")
    a("L_xdone:\ns_mov_b64 exec, -1")
    a("s_waitcnt vmcnt(18)")
    stamp(a, opt, 2, 1)
    a("L_count:")
    for k in range(RMAX):
        a(f"v_cmpx_lt_u32 vcc, {k}, v7")
        if k >= 4 and k % 2 == 0: a("s_cbranch_execz L_cdone")
        a(f"v_and_b32_sdwa v{CA+k}, s{sFC}, v{REC+k} dst_sel:DWORD dst_unused:UNUSED_PAD src0_sel:DWORD src1_sel:BYTE_3")
        a(f"ds_add_rtn_u32 v{RANK+k}, v{CA+k}, v13 offset:{CNT}")
        a(f"v_bfe_u32 v{PAIR+2*k}, v{REC+k}, 12, 14\nv_and_b32 v8, 0xfff, v{REC+k}\nv_add_lshl_u32 v{PAIR+2*k+1}, v8, v4, 5")
    a("L_cdone:\ns_mov_b64 exec, -1")
    a("s_waitcnt lgkmcnt(0)\ns_barrier")
    stamp(a, opt, 3, 1)
    a(f"ds_read_b32 v16, v12 offset:{CNT}\nds_read_b32 v17, v11 offset:{FLAG}")
    a("s_waitcnt lgkmcnt(0)")
    a("v_add_u32 v18, 3, v16\nv_lshrrev_b32 v18, 2, v18\nv_mov_b32 v19, v18\nv_readfirstlane_b32 s46, v17")
    dpp_scan(a, 19)
    a("s_nop 0\nv_readlane_b32 s47, v19, 63             ; Q")
    a(f"v_sub_u32 v19, v19, v18\nv_lshlrev_b32 v20, 5, v19\nv_add_u32 v20, {LIST}, v20")
    a(f"ds_write_b32 v12, v20 offset:{BASES}")
    a(f"s_add_u32 s{sG}, s47, 7\ns_lshr_b32 s{sG}, s{sG}, 3")
    a(f"s_cmp_gt_u32 s{sG}, {CAPG}\ns_cselect_b32 s46, 1, s46\ns_andn2_b32 s46, s46, s{sMODE}\ns_cmp_lg_u32 s46, 0\ns_cbranch_scc1 L_fb_enter")
    for k in range(RMAX):
        a(f"v_cmpx_lt_u32 vcc, {k}, v7")
        if k >= 4 and k % 2 == 0: a("s_cbranch_execz L_bdone")
        a(f"ds_read_b32 v{CA+k}, v{CA+k} offset:{BASES}")
    a("L_bdone:\ns_mov_b64 exec, -1")
    a(f"v_lshlrev_b32 v21, 7, v1\nv_add_u32 v21, {XA}, v21\nv_add_u32 v22, s{sWV}, v19\nv_lshlrev_b32 v22, 2, v22\nv_add_u32 v22, {QI}, v22")
    a(f"s_mov_b32 s46, s{sWV}\ns_cmp_eq_u32 s46, 0\ns_cselect_b32 s48, 0x80000000, 0\nv_or_b32 v23, s48, v21")
    a("L_qloop:")
    a("v_cmpx_lt_u32 vcc, s46, v18\ns_cbranch_execz L_qdone")
    a("ds_write_b32 v22, v23\nv_mov_b32 v23, v21\nv_add_u32 v22, 32, v22\ns_add_u32 s46, s46, 8\ns_branch L_qloop")
    a("L_qdone:\ns_mov_b64 exec, -1")
    a("v_mov_b32 v24, 0x3fff\nv_mov_b32 v25, 0x7fffffe0")
    a(f"s_cmp_gt_u32 s{sWV}, 2\ns_cbranch_scc1 L_pad3")
    a(f"v_add_u32 v26, s{sWV}, v16\nv_lshlrev_b32 v27, 2, v18\nv_cmpx_lt_u32 vcc, v26, v27\nv_lshl_add_u32 v26, v26, 3, v20\nds_write_b64 v26, v[24:25]")
    a("s_branch L_paddone")
    a("L_pad3:")
    a(f"s_lshl_b32 s46, s{sG}, 3\ns_sub_u32 s46, s46, s47")
    a(f"s_cmp_eq_u32 s{sWV}, 3\ns_cbranch_scc0 L_pad4")
    a(f"s_lshl_b32 s46, s46, 2\ns_lshl_b32 s48, s47, 5\ns_add_u32 s48, s48, {LIST}\nv_cmpx_gt_u32 vcc, s46, v1\nv_lshl_add_u32 v26, v1, 3, s48\nds_write_b64 v26, v[24:25]")
    a("s_branch L_paddone")
    a("L_pad4:")
    a(f"s_cmp_eq_u32 s{sWV}, 4\ns_cbranch_scc0 L_paddone")
    a(f"s_lshl_b32 s48, s47, 2\ns_add_u32 s48, s48, {QI}\nv_mov_b32 v27, {XA}\nv_cmpx_gt_u32 vcc, s46, v1\nv_lshl_add_u32 v26, v1, 2, s48\nds_write_b32 v26, v27")
    a("L_paddone:\ns_mov_b64 exec, -1")
    a(f"s_lshr_b32 s46, s{sG}, 3\ns_and_b32 s47, s{sG}, 7\ns_mul_i32 s48, s46, s{sWV}\ns_min_u32 s49, s47, s{sWV}\ns_add_u32 s48, s48, s49")
    a(f"s_cmp_lt_u32 s{sWV}, s47\ns_addc_u32 s{sN}, s46, 0")
    a(f"s_lshl_b32 s46, s{sN}, 7\ns_lshl_b32 s47, s48, 8")
    a(f"v_mad_u32_u24 v{LPX}, v14, s46, v{CX}\nv_add_u32 v{LPX}, s47, v{LPX}")
    a(f"v_bfe_u32 v26, v1, 3, 1\nv_mad_u32_u24 v{LPE}, v26, s46, v{CE}\nv_add_u32 v{LPE}, s47, v{LPE}")
    a(f"s_lshl_b32 s46, s{sN}, 4\ns_lshl_b32 s47, s48, 5")
    a(f"v_mad_u32_u24 v{QP}, v14, s46, v{CQ}\nv_add_u32 v{QP}, s47, v{QP}")
    a("s_waitcnt lgkmcnt(0)")
    for k in range(RMAX):
        a(f"v_cmpx_lt_u32 vcc, {k}, v7")
        if k >= 4 and k % 2 == 0: a("s_cbranch_execz L_pdone")
        a(f"v_lshl_add_u32 v{CA+k}, v{RANK+k}, 3, v{CA+k}\nds_write_b64 v{CA+k}, {vr(PAIR+2*k,2)}")
    a("L_pdone:\ns_mov_b64 exec, -1")
    a("s_waitcnt lgkmcnt(0)\ns_barrier")
    stamp(a, opt, 4, 1)
    a(f"s_cmp_eq_u32 s{sN}, 0\ns_cbranch_scc1 L_rend")
    a.ext(list_reads(0))
    a(f"ds_read_b32 v{W[0]}, v{QP}")
    a.ext(dma_enable(0))
    a("s_waitcnt lgkmcnt(1)")
    for b in dma_group(0, 0): a.ext(b)
    a.ext(list_reads(1))
    a.ext(dma_enable(1))
    a("s_waitcnt lgkmcnt(3)")
    a(f"v_and_or_b32 v{XAA}, v{W[0]}, s{sMSK}, v{XAC}\nv_cmp_gt_i32 s[{sF[0]}:{sF[0]+1}], 0, v{W[0]}")
    a(f"ds_read_b64_tr_b16 {vr(XAB[0],2)}, v{XAA}\nds_read_b64_tr_b16 {vr(XAB[1],2)}, v{XAA} offset:64")
    a("s_waitcnt lgkmcnt(2)")
    for b in dma_group(1, 1): a.ext(b)
    a(f"s_or_b32 s{sFO[0]}, s{sF[0]}, s{sF[0]+1}")
    a(f"v_mov_b32_dpp v{T2}, v{W[0]} row_newbcast:0 row_mask:0xf bank_mask:0xf")
    a(f"v_mov_b32 v{AC[0]}, 0\nv_mov_b32 v{AC[1]}, 0\nv_and_b32 v{T2}, s{sMSK}, v{T2}")
    a(f"v_lshl_add_u32 v{CUR[0]}, v{T2}, 2, v{N8}\nv_lshl_add_u32 v{CUR[1]}, v{T2}, 2, v{N8}")
    a("s_waitcnt vmcnt(5)")
    stamp(a, opt, 5, 1)
    a(f"ds_read_b128 {vr(E,4)}, v{ER}")
    for s in range(4): a(f"ds_read_b128 {vr(X+4*s,4)}, v{AR+s}")
    g0 = gate_chain(0)
    a("s_waitcnt lgkmcnt(4)")
    a(g0[0]); a(g0[1])
    for s in range(4):
        a(f"s_waitcnt lgkmcnt({3-s})"); a(g0[2+s])
    a("s_nop 7\ns_nop 3")
    stubs = []
    s0f = slot0(0, True, stubs)
    s0 = [slot0(0, False, stubs), slot0(1, False, stubs)]
    s1 = [slot1(0, stubs), slot1(1, stubs)]
    dec = [f"s_sub_u32 s{sN}, s{sN}, 1", f"s_cmp_eq_u32 s{sN}, 0"]
    inc = [f"v_add_u32 v{LPX}, 256, v{LPX}", f"v_add_u32 v{LPE}, 256, v{LPE}", f"v_add_u32 v{QP}, 32, v{QP}"]
    dr = [bpart(1, 0, "d0", stubs), bpart(1, 1, "d1", stubs)]
    a.ext(s0f)
    a("s_branch L_s1_u0")
    a(".p2align 6\nL_u0:")
    a.ext(s0[0])
    a("L_s1_u0:")
    a.ext(s1[0]); a.ext(dec); a("s_cbranch_scc1 L_drain0")
    a.ext(s0[1]); a.ext(s1[1]); a.ext(inc); a.ext(dec); a("s_cbranch_scc0 L_u0")
    a.ext(dr[1]); a("s_branch L_flush")
    a("L_drain0:"); a.ext(dr[0])
    a("L_flush:")
    a(f"v_cvt_f64_f32 {vr(TMP,2)}, v{AC[0]}\nv_cvt_f64_f32 {vr(XW,2)}, v{AC[1]}")
    a(f"ds_add_f64 v{CUR[0]}, {vr(TMP,2)}\nds_add_f64 v{CUR[1]}, {vr(XW,2)} offset:256")
    bad = check(g0 + ["s_nop 7", "s_nop 3"] + s0f + ["s_branch x"] + s1[0] + dec + ["s_cbranch x"] + s0[1] + s1[1] + inc + dec + ["s_cbranch x"] + s0[0] + s1[0] + dec + ["s_cbranch x"] + dr[0], "loop")
    bad += check(s1[1] + inc + dec + ["s_cbranch x"] + dr[1], "drain1")
    assert bad == 0
    a("L_rend:")
    a("s_waitcnt vmcnt(0) lgkmcnt(0)")
    stamp(a, opt, 6, 1)
    a("s_barrier")
    a(f"s_add_u32 s{sRND}, s{sRND}, 1\ns_cmp_lt_u32 s{sRND}, s{sNR}\ns_cbranch_scc1 L_fb_round")
    a(f"s_cmp_eq_u32 s{sWV}, 7\ns_cbranch_scc1 L_fin")
    a(f"s_lshl_b32 s46, s{sWV}, 12\ns_add_u32 s46, s46, {ACC}\nv_add_u32 v2, s46, v10")
    for q in range(4): a(f"ds_read_b128 {vr(16+4*q,4)}, v2 offset:{1024*q}")
    a(f"s_lshl_b32 s46, s{sWV}, 18\ns_lshl_b32 s47, s{sB}, 7\ns_add_u32 s46, s46, s47\nv_lshlrev_b32 v3, 15, v14\nv_lshl_add_u32 v3, v15, 2, v3\nv_add_u32 v3, s46, v3")
    a(f"s_mov_b32 s46, {hex(f2u(-LOG2E))}\nv_add_u32 v4, 0x10000, v3\nv_add_u32 v5, 0x20000, v3\nv_add_u32 v6, 0x30000, v3")
    for q in range(4):
        a(f"s_waitcnt lgkmcnt({3-q})")
        z = 32 + 2*q; t = 40 + 2*q
        a(f"v_cvt_f32_f64 v{z}, {vr(16+4*q,2)}\nv_cvt_f32_f64 v{z+1}, {vr(18+4*q,2)}")
        a(f"v_mul_f32 v{t}, s46, v{z}\nv_mul_f32 v{t+1}, s46, v{z+1}")
        a(f"v_exp_f32 v{t}, v{t}\nv_exp_f32 v{t+1}, v{t+1}\ns_nop 0")
        a(f"v_add_f32 v{t}, 1.0, v{t}\nv_add_f32 v{t+1}, 1.0, v{t+1}")
        a(f"v_rcp_f32 v{t}, v{t}\nv_rcp_f32 v{t+1}, v{t+1}\ns_nop 0")
        a(f"v_mul_f32 v{t}, v{z}, v{t}\nv_mul_f32 v{t+1}, v{z+1}, v{t+1}")
        a(f"v_cvt_pk_bf16_f32 v{t}, v{t}, v{t+1}")
        a(f"buffer_store_dword v{t}, v{3+q}, s[24:27], 0 offen")
    a("L_fin:")
    if opt.get("ts"):
        a("s_waitcnt vmcnt(0)")
        stamp(a, opt, 7, 1)
        stamp_store(a, opt, 8, 1, 16, sWV, 8)
    a("s_endpgm")
    for st in stubs: a.ext(stub(*st))
    a("L_fb_enter:")
    a(f"ds_max_u32 v11, v3 offset:{MAXL}\ns_mov_b32 s{sMODE}, 1\ns_waitcnt lgkmcnt(0)\ns_barrier")
    a(f"ds_read_b32 v16, v11 offset:{MAXL}\ns_waitcnt lgkmcnt(0)\nv_readfirstlane_b32 s46, v16")
    a(f"s_add_u32 s46, s46, {2*FBJ-1}\ns_mul_i32 s46, s46, {(65536 + 2*FBJ - 1)//(2*FBJ)}\ns_lshr_b32 s{sNR}, s46, 16")
    a("L_fb_round:")
    a(f"s_cmp_lg_u32 s{sWV}, 0\ns_cbranch_scc1 L_fb_nz\nds_write_b32 v12, v11 offset:{CNT}\nL_fb_nz:")
    a(f"s_mul_i32 s46, s{sRND}, {2*FBJ}\nv_mul_u32_u24 v6, {FBJ}, v9\nv_add_u32 v6, s46, v6\nv_sub_u32 v7, v3, v6\nv_max_i32 v7, 0, v7\nv_min_u32 v7, {FBJ}, v7\nv_add_u32 v6, v6, v5")
    load_records(a, "r", (FBJ + 3) // 4)
    a("s_waitcnt vmcnt(0) lgkmcnt(0)\ns_barrier\ns_branch L_count")
    a("K2_end:\ns_endpgm")
    return a.L

def desc(name, vg, sg):
    return f""".amdhsa_kernel {name}
  .amdhsa_next_free_vgpr {vg}
  .amdhsa_next_free_sgpr {sg}
  .amdhsa_accum_offset {(vg+3)//4*4}
  .amdhsa_group_segment_fixed_size 0
  .amdhsa_kernarg_size 80
  .amdhsa_user_sgpr_count 2
  .amdhsa_user_sgpr_kernarg_segment_ptr 1
  .amdhsa_system_sgpr_workgroup_id_x 1
  .amdhsa_float_denorm_mode_32 3
.end_amdhsa_kernel"""

def gen(opt):
    KN = "gather_scatter__edge_featured_mpnn_egc__graph_kernel"
    hdr = open("gather_scatter__edge_featured_mpnn_egc__graph.s.ref").read().split("\n")
    hdr = [l for l in hdr if l.startswith(";") and "@launch" not in l and "Override launch" not in l and "grid=ceil" not in l]
    out = hdr + [f"; @launch kernel=bin_kernel grid=({NCH+3},1,1) block=(832,1,1) lds={K1_LDS}",
                 f"; @launch kernel={KN} grid=(256,1,1) block=(512,1,1) lds={K2_LDS}",
                 '.amdgcn_target "amdgcn-amd-amdhsa--gfx950"', ".text"]
    k1 = gen_k1(opt); k2 = gen_k2(opt)
    check(k1, "k1-linear"); check(k2, "k2-linear")
    fmt = lambda L: [l if (l.endswith(":") or l.startswith(".")) else "    " + l for l in L]
    out += fmt(k1) + fmt(k2)
    out += ['.section .rodata,"a"', ".p2align 6", desc("bin_kernel", 40, 102 if opt.get("ts") else 40), ".p2align 6", desc(KN, 256, 102 if opt.get("ts") else 64)]
    return "\n".join(out) + "\n"

if __name__ == "__main__":
    opt = {}
    outp = sys.argv[1]
    for kv in sys.argv[2:]:
        k, v = kv.split("="); opt[k] = int(v)
    open(outp, "w").write(gen(opt))
```

```python
import sys
from asmlib import *

N = 12500; NE = 800000; CH = 3200; NCH = 250
REC_OFF = 0; TAB_OFF = 3200000; FRAG_OFF = 3456000
TS_OFF = 8 << 20
LOG2E = 1.4426950408889634
import struct
def f2u(x): return struct.unpack("<I", struct.pack("<f", x))[0]

class Asm:
    def __init__(self): self.L = []
    def __call__(self, s):
        for l in s.split("\n"):
            l = l.strip()
            if l: self.L.append(l)
    def ext(self, lst):
        for s in lst: self(s)

def srd(a, d, base, size, off=0):
    if off:
        a(f"s_add_u32 s{d}, s{base}, {off}\ns_addc_u32 s{d+1}, s{base+1}, 0")
    elif d != base:
        a(f"s_mov_b32 s{d}, s{base}\ns_mov_b32 s{d+1}, s{base+1}")
    a(f"s_mov_b32 s{d+2}, {size}\ns_mov_b32 s{d+3}, 0x20000")

def dpp_scan(a, v):
    for sh in (1, 2, 4, 8):
        a(f"s_nop 1\nv_add_u32_dpp v{v}, v{v}, v{v} row_shr:{sh} row_mask:0xf bank_mask:0xf bound_ctrl:1")
    a(f"s_nop 1\nv_add_u32_dpp v{v}, v{v}, v{v} row_bcast:15 row_mask:0xa bank_mask:0xf")
    a(f"s_nop 1\nv_add_u32_dpp v{v}, v{v}, v{v} row_bcast:31 row_mask:0xc bank_mask:0xf")

def stamp(a, opt, idx, kern):
    if opt.get("ts"):
        a(f"s_memrealtime s[{60+2*idx}:{61+2*idx}]")
        if kern == 1 and idx in (4, 6): a(f"s_memtime s[{76+(idx-4)}:{77+(idx-4)}]")

def stamp_store(a, opt, n, kern, wsreg, wavereg, nw):
    if not opt.get("ts"): return
    a("s_waitcnt lgkmcnt(0)")
    if opt.get("ts") == 2:
        a("s_load_dwordx2 s[92:93], s[0:1], 64\ns_waitcnt lgkmcnt(0)")
        if not kern: a("s_add_u32 s92, s92, 512\ns_addc_u32 s93, s93, 0")
        a("s_mov_b32 s94, 256\ns_mov_b32 s95, 0x20000")
        a(f"s_cmp_lg_u32 s{wavereg}, 0\ns_cbranch_scc1 L_ts_skip{kern}")
        a("s_mov_b64 exec, 1")
        base = 0 if kern == 0 else 6
        a(f"s_not_b32 s96, s60\nv_mov_b32 v2, s96\nv_mov_b32 v3, {4*base}\nbuffer_atomic_umax v2, v3, s[92:95], 0 offen")
        for i in range(n):
            a(f"v_mov_b32 v2, s{60+2*i}\nv_mov_b32 v3, {4*(base+1+i)}\nbuffer_atomic_umax v2, v3, s[92:95], 0 offen")
        a(f"L_ts_skip{kern}:")
        a("s_mov_b64 exec, -1")
        return
    a(f"s_add_u32 s92, s{wsreg}, {TS_OFF + kern*(1<<20)}\ns_addc_u32 s93, s{wsreg+1}, 0\ns_mov_b32 s94, 0x100000\ns_mov_b32 s95, 0x20000")
    a(f"s_mul_i32 s96, s2, {nw}\ns_add_u32 s96, s96, s{wavereg}\ns_lshl_b32 s96, s96, 6")
    a("s_mov_b64 exec, 1")
    for i in range(n):
        a(f"v_mov_b32 v2, s{60+2*i}\nv_mov_b32 v3, {4*i}\nbuffer_store_dword v2, v3, s[92:95], s96 offen")
    a("s_mov_b64 exec, -1")

K1_CNT = 0; K1_BASE = 1024; K1_SRT = 2048; K1_LDS = 2048 + CH * 4

def gen_k1(opt):
    a = Asm()
    a(".globl bin_kernel\n.p2align 8\n.type bin_kernel,@function\nbin_kernel:")
    a(f"s_cmp_ge_u32 s2, {NCH+3}\ns_cbranch_scc1 K1_end")
    stamp(a, opt, 0, 0)
    if opt.get("spin"): a("s_memrealtime s[34:35]")
    a(f"s_cmp_ge_u32 s2, {NCH}\ns_cbranch_scc1 K1_weights")
    a("s_load_dwordx4 s[4:7], s[0:1], 16")
    a("s_load_dwordx2 s[16:17], s[0:1], 72    ; ws")
    a("s_load_dwordx2 s[12:13], s[0:1], 0     ; x")
    a("v_lshrrev_b32 v1, 6, v0")
    a("v_lshlrev_b32 v2, 4, v0                ; t*16")
    a("v_readfirstlane_b32 s28, v1            ; wave")
    a("v_and_b32 v1, 63, v0                   ; lane")
    a(f"s_mul_i32 s3, s2, {CH*4}")
    a("v_mov_b32 v20, 0\nv_mov_b32 v21, 0\nv_mov_b32 v22, 0\nv_mov_b32 v23, 0\nv_mov_b32 v24, 1")
    a("v_lshlrev_b32 v3, 4, v1                ; lane*16")
    a(f"v_cmp_gt_u32 s[30:31], {CH//4 - 768}, v1")
    a("s_cmp_eq_u32 s28, 12\ns_cselect_b64 s[30:31], s[30:31], -1")
    a("s_waitcnt lgkmcnt(0)")
    srd(a, 8, 6, NE*4)
    srd(a, 4, 4, NE*4)
    a("s_mov_b64 exec, s[30:31]")
    a("buffer_load_dwordx4 v[4:7], v2, s[8:11], s3 offen\nbuffer_load_dwordx4 v[8:11], v2, s[4:7], s3 offen")
    a("s_mov_b64 exec, -1")
    npf = 0 if opt.get("nopf") else 4
    srd(a, 12, 12, N*128)
    a("s_lshr_b32 s32, s2, 3\ns_mul_i32 s32, s32, 50000\nv_add_u32 v30, s32, v2")
    srd(a, 20, 16, NCH*1024, TAB_OFF)
    srd(a, 16, 16, NE*4)
    a("s_cmp_lg_u32 s28, 0\ns_cbranch_scc1 K1_nozero")
    a(f"ds_write_b128 v3, v[20:23] offset:{K1_CNT}")
    a("s_waitcnt lgkmcnt(0)")
    a("K1_nozero:")
    a("s_barrier")
    for j in range(npf):
        a(f"buffer_load_dwordx4 {vr(40+4*j,4)}, v30, s[12:15], 0 offen")
        if j < 3: a("v_add_u32 v30, 13312, v30")
    a("s_mov_b64 exec, s[30:31]")
    a("v_lshlrev_b32 v25, 2, v0")
    a("s_mov_b32 s29, 0xfc000000")
    a(f"s_waitcnt vmcnt({1+npf})")
    stamp(a, opt, 1, 0)
    for i in range(4):
        a(f"v_lshlrev_b32_sdwa v{12+i}, 2, v{4+i} dst_sel:DWORD dst_unused:UNUSED_PAD src0_sel:DWORD src1_sel:BYTE_0")
        a(f"ds_add_rtn_u32 v{16+i}, v{12+i}, v24 offset:{K1_CNT}")
    for i in range(4):
        a(f"v_lshlrev_b32 v{4+i}, 18, v{4+i}")
        if i: a(f"v_add_u32 v26, {i}, v25")
        a(f"v_and_or_b32 v{4+i}, v{4+i}, s29, v{26 if i else 25}")
    a(f"s_waitcnt vmcnt({npf})")
    for i in range(4):
        a(f"v_lshl_or_b32 v{4+i}, v{8+i}, 12, v{4+i}")
    a("s_mov_b64 exec, -1")
    a("s_waitcnt lgkmcnt(0)\ns_barrier")
    stamp(a, opt, 2, 0)
    a(f"ds_read_b128 v[20:23], v3 offset:{K1_CNT}")
    a("s_waitcnt lgkmcnt(0)")
    a("v_add_u32 v9, v20, v21\nv_add_u32 v10, v9, v22\nv_add_u32 v11, v10, v23\nv_mov_b32 v26, v11")
    dpp_scan(a, 26)
    a("v_sub_u32 v26, v26, v11")
    a("v_add_u32 v27, v26, v20\nv_add_u32 v28, v26, v9\nv_add_u32 v29, v26, v10")
    for i in range(4):
        a(f"v_lshlrev_b32 v{32+i}, 2, v{26+i}")
    a(f"ds_write_b128 v3, v[32:35] offset:{K1_BASE}")
    a("s_cmp_lg_u32 s28, 0\ns_cbranch_scc1 K1_notab")
    for i in range(4):
        a(f"v_lshl_or_b32 v{36+i}, v{20+i}, 16, v{26+i}")
    a("s_lshl_b32 s33, s2, 10")
    a("buffer_store_dwordx4 v[36:39], v3, s[20:23], s33 offen")
    a("K1_notab:")
    a("s_mov_b64 exec, s[30:31]")
    for i in range(4):
        a(f"ds_read_b32 v{12+i}, v{12+i} offset:{K1_BASE}")
    for i in range(4):
        a(f"s_waitcnt lgkmcnt({3-i if i < 1 else 3})")
        a(f"v_lshl_add_u32 v{12+i}, v{16+i}, 2, v{12+i}")
        a(f"ds_write_b32 v{12+i}, v{4+i} offset:{K1_SRT}")
    a("s_waitcnt lgkmcnt(0)\ns_barrier")
    stamp(a, opt, 3, 0)
    a(f"ds_read_b128 v[4:7], v2 offset:{K1_SRT}")
    a("s_waitcnt lgkmcnt(0)")
    a("buffer_store_dwordx4 v[4:7], v2, s[16:19], s3 offen")
    a("s_mov_b64 exec, -1")
    if opt.get("spin") == 1:
        a("s_or_b32 s3, s2, s28\ns_cmp_lg_u32 s3, 0\ns_cbranch_scc1 K1_end\ns_mov_b32 s18, 0x1000000\nv_mov_b32 v4, s34\nv_mov_b32 v5, 0x800000\nbuffer_store_dword v4, v5, s[16:19], 0 offen")
    if opt.get("ts"):
        a("s_waitcnt vmcnt(0)")
        stamp(a, opt, 4, 0)
        stamp_store(a, opt, 5, 0, 16, 28, 13)
    a("s_endpgm")
    a("K1_weights:")
    a("s_load_dwordx4 s[4:7], s[0:1], 32      ; u_w, v_w")
    a("s_load_dwordx2 s[8:9], s[0:1], 48      ; g_w")
    a("s_load_dwordx2 s[16:17], s[0:1], 72    ; ws")
    a("v_lshrrev_b32 v1, 6, v0\ns_nop 0\nv_readfirstlane_b32 s28, v1")
    a(f"s_sub_u32 s3, s2, {NCH}\ns_mul_i32 s3, s3, 13\ns_add_u32 s3, s3, s28")
    a("s_cmp_ge_u32 s3, 34\ns_cbranch_scc1 K1_end")
    a("v_and_b32 v1, 63, v0")
    a("s_waitcnt lgkmcnt(0)")
    a(f"s_mov_b32 s12, s8\ns_mov_b32 s13, s9\ns_mov_b32 s14, {144*128}\ns_mov_b32 s15, 0x20000")
    a(f"s_mov_b32 s29, 64\ns_mov_b32 s30, s3\ns_mov_b32 s31, {hex(f2u(-LOG2E))}")
    a("s_cmp_lt_u32 s3, 8\ns_cbranch_scc1 K1_wgo")
    a("s_mov_b32 s29, 128\ns_sub_u32 s30, s3, 16\ns_lshl_b32 s30, s30, 2")
    a("s_and_b32 s32, s3, 0xfe\ns_cmp_eq_u32 s32, 16\ns_cbranch_scc1 K1_wgo")
    a("s_mov_b32 s29, 0\ns_mov_b32 s31, 1.0\ns_sub_u32 s30, s3, 18\ns_cmp_lt_u32 s30, 8\ns_cbranch_scc1 K1_wgo")
    a(f"s_mov_b32 s14, {64*128}")
    a("s_mov_b32 s12, s6\ns_mov_b32 s13, s7\ns_sub_u32 s30, s3, 8\ns_cmp_lt_u32 s3, 16\ns_cbranch_scc1 K1_wgo")
    a("s_mov_b32 s12, s4\ns_mov_b32 s13, s5\ns_sub_u32 s30, s3, 26")
    a("K1_wgo:")
    a("s_and_b32 s32, s30, 3\ns_lshl_b32 s32, s32, 4\ns_add_u32 s32, s32, s29\ns_lshl_b32 s32, s32, 7   ; (row0+16s)*128")
    a("s_lshr_b32 s33, s30, 2\ns_lshl_b32 s33, s33, 6\ns_add_u32 s32, s32, s33                        ; + 64*T")
    a("v_lshrrev_b32 v2, 5, v1\nv_lshlrev_b32 v2, 10, v2\nv_and_b32 v3, 31, v1\nv_lshl_add_u32 v2, v3, 1, v2")
    for q in range(8):
        a(f"buffer_load_ushort v{4+q}, v2, s[12:15], s32 offen offset:{128*q}")
    srd(a, 16, 16, 34*1024, FRAG_OFF)
    a("s_lshl_b32 s33, s3, 10\nv_lshlrev_b32 v3, 4, v1")
    a("s_waitcnt vmcnt(0)")
    for q in range(8):
        a(f"v_lshlrev_b32 v{4+q}, 16, v{4+q}\nv_mul_f32 v{4+q}, s31, v{4+q}")
    for q in range(4):
        a(f"v_cvt_pk_bf16_f32 v{12+q}, v{4+2*q}, v{5+2*q}")
    a("buffer_store_dwordx4 v[12:15], v3, s[16:19], s33 offen")
    a("K1_end:\ns_endpgm")
    return a.L

CNT = 0; BASES = 256; FLAG = 512; MAXL = 516
STG = 1024; WSTG = 10240; BUF = 5120
LIST = STG + 8 * WSTG; CAPG = 128; CAP = CAPG * 32
QI = LIST + CAP * 8
NODE = (QI + CAP + 64 + 127) // 128 * 128
NS = 640
K2_LDS = NODE + 56 * NS
WST = STG + 8192
assert K2_LDS <= 163840
RMAX = 20
FBJ = 6

G = [16, 32]; R = [48, 64]; H = [80, 96]
X = 112; E = 128; XAB = [132, 136]; SEL = 140; ONE = 144
WB = 148; WV = 180; WC = 212
AC = [220, 221]; CUR = [222, 223]; TMP = 224; T2 = 226
XW = 228; EW = 232; W = [233, 234]; XAA = 235
COL = 236; EH = 240; XAC = 241; N8 = 242; AR = 243; ER = 247; LPX = 248; LPE = 249; QP = 250
CX = 251; CE = 252; CQ = 253
REC = 16; RANK = 36; CA = 56; PAIR = 76
sF = [32, 36]; sFO = [34, 35]
sWV = 28; sB = 29; sN = 30; sSTG = 38; sRND = 39; sMODE = 40; sXSZ = 41; sESZ = 42; sMSK = 43; sFC = 44; sG = 45; sNR = 50
MF = "v_mfma_f32_32x32x16_bf16"
def mf(d, A, B, c): return f"{MF} {vr(d,16)}, {vr(A,4)}, {vr(B,4)}, {c if c == '0' else vr(c,16)}"

OPT = {}
def weave(val, extra):
    out = []
    ex = sorted(extra, key=lambda t: t[0])
    k = 0
    for i, x in enumerate(val + [None]):
        while k < len(ex) and ex[k][0] <= i:
            out += ex[k][1]; k += 1
        if x is not None: out.append(x)
    assert k == len(ex)
    return out

def dma_group(p, ofs):
    b = []
    for k in range(4):
        b.append(([f"s_add_u32 m0, s{sSTG}, {p*BUF}"] if k == 0 else []) +
                 [f"v_lshl_add_u32 v{XW+k}, v{XW+k}, 7, v{COL+k}",
                  f"buffer_load_dwordx4 v{XW+k}, s[8:11], 0 offen offset:{1024*k} lds"])
    b.append([f"s_add_u32 m0, s{sSTG}, {p*BUF + 4096}", f"v_or_b32 v{EW}, v{EW}, v{EH}",
              f"buffer_load_dwordx4 v{EW}, s[12:15], 0 offen lds"])
    if OPT.get("nodma") == 1 and ofs >= 2: b = [x[:-1] for x in b]
    return b

def list_reads(ofs):
    d = ofs * 32
    return [f"ds_read2_b32 {vr(XW,2)}, v{LPX} offset0:{d} offset1:{d+2}",
            f"ds_read2_b32 {vr(XW+2,2)}, v{LPX} offset0:{d+4} offset1:{d+6}",
            f"ds_read_b32 v{EW}, v{LPE} offset:{ofs*128+4}"]

def dma_enable(thr):
    return [f"s_cmp_gt_u32 s{sN}, {thr}", f"s_cselect_b32 s10, s{sXSZ}, 0", f"s_cselect_b32 s14, s{sESZ}, 0"]

def bpart(T, par, tag, stubs):
    r, h = R[T], H[T]
    rc = lambda q: [f"v_rcp_f32 v{r+4*q+i}, v{r+4*q+i}" for i in range(4)]
    def fm(q):
        lab = f"{tag}_{q}"
        if OPT.get("nochk"): return [f"v_fmac_f32 v{AC[T]}, v{r+4*q+i}, v{h+4*q+i}" for i in range(4)]
        stubs.append((lab, T, par, q))
        return [f"s_bitcmp1_b32 s{sFO[par]}, {4*q}\ns_cbranch_scc1 L_fl_{lab}\nL_bk_{lab}:\nv_fmac_f32 v{AC[T]}, v{r+4*q}, v{h+4*q}"] + \
               [f"v_fmac_f32 v{AC[T]}, v{r+4*q+i}, v{h+4*q+i}" for i in range(1, 4)]
    return rc(0) + rc(1) + fm(0) + rc(2) + fm(1) + rc(3) + fm(2) + fm(3)

def stub(lab, T, par, q):
    if OPT.get("emptystub"): return [f"L_fl_{lab}:", f"s_branch L_bk_{lab}"]
    return [f"L_fl_{lab}:",
            f"s_bfe_i32 exec_lo, s{sF[par]}, {hex(0x10000 + 4*q)}",
            f"s_bfe_i32 exec_hi, s{sF[par]+1}, {hex(0x10000 + 4*q)}",
            f"v_cvt_f64_f32 {vr(TMP,2)}, v{AC[T]}",
            f"v_mov_b32 v{AC[T]}, 0",
            f"ds_add_f64 v{CUR[T]}, {vr(TMP,2)} offset:{256*T}",
            f"v_add_u32_dpp v{CUR[T]}, v{W[par]}, v{N8} row_newbcast:{4*q} row_mask:0xf bank_mask:0xf",
            "s_mov_b64 exec, -1", f"s_branch L_bk_{lab}"]

def gate_chain(T):
    g = G[T]
    return [mf(g, SEL, XAB[T], '0'), mf(g, E, WC+4*T, g)] + [mf(g, X+4*s, WB+16*T+4*s, g) for s in range(4)]
def hv_chain(T):
    return [mf(H[T], X+4*s, WV+16*T+4*s, '0' if s == 0 else H[T]) for s in range(4)]

def slot0(u, first, stubs):
    ex = [f"v_exp_f32 v{G[0]+i}, v{G[0]+i}" for i in range(16)]
    g, h = gate_chain(1), hv_chain(0)
    m1 = mf(R[0], ONE, ONE, G[0])
    d = dma_group(u, u + 2)
    wread = [f"ds_read_b32 v{W[u^1]}, v{QP} offset:{(u+1)*16}"]
    if first:
        extra = [(0, list_reads(u+2) + dma_enable(2) + [g[0]]), (2, [h[0]]), (4, [g[1]]), (6, [h[1]]), (8, [g[2], "s_waitcnt lgkmcnt(0)"] + d[0]),
                 (10, [h[2]] + d[1]), (12, [g[3]] + d[2]), (14, [h[3]] + d[3]), (16, [g[4]] + d[4] + [m1, g[5]] + wread + ["s_nop 7"])]
        return weave(ex, extra)
    val = ex + bpart(1, u ^ 1, f"a{u}", stubs)
    extra = [(0, list_reads(u+2) + dma_enable(2) + [g[0]]), (3, [h[0]]), (7, [g[1]]), (8, ["s_waitcnt lgkmcnt(0)"] + d[0]), (10, [h[1]]),
             (13, [g[2]]), (14, d[1]), (18, [m1]), (20, d[2]), (21, [g[3]]), (25, [h[2]]), (26, d[3]), (29, [g[4]]), (32, d[4]), (33, [h[3]]), (37, [g[5]]),
             (48, wread)]
    return weave(val, extra)

def slot1(u, stubs):
    ex = [f"v_exp_f32 v{G[1]+i}, v{G[1]+i}" for i in range(16)]
    val = ex + bpart(0, u, f"b{u}", stubs)
    g, h = gate_chain(0), hv_chain(1)
    m1 = mf(R[1], ONE, ONE, G[1])
    p = u ^ 1
    xr = lambda s: f"ds_read_b128 {vr(X+4*s,4)}, v{AR+s} offset:{p*BUF}"
    extra = [(0, ["s_waitcnt vmcnt(5)", f"ds_read_b128 {vr(E,4)}, v{ER} offset:{p*BUF}", h[0], xr(0)]),
             (2, ["s_waitcnt lgkmcnt(2)", f"v_and_or_b32 v{XAA}, v{W[p]}, s{sMSK}, v{XAC}", f"v_cmp_gt_i32 s[{sF[p]}:{sF[p]+1}], 0, v{W[p]}",
                  f"ds_read_b64_tr_b16 {vr(XAB[0],2)}, v{XAA} offset:512", f"ds_read_b64_tr_b16 {vr(XAB[1],2)}, v{XAA} offset:576"]),
             (4, [h[1], xr(1)]), (8, [h[2], xr(2), f"s_or_b32 s{sFO[p]}, s{sF[p]}, s{sF[p]+1}"]), (12, [h[3], xr(3)]),
             (15, ["s_waitcnt lgkmcnt(4)", g[0]]), (18, [m1]), (21, [g[1]]), (25, [g[2]]),
             (29, ["s_waitcnt lgkmcnt(0)", g[3]]), (33, [g[4]]), (37, [g[5]])]
    return weave(val, extra)

def load_records(a, tag, nld):
    a("v_lshlrev_b32 v8, 2, v6")
    for k in range(nld):
        a(f"v_cmpx_lt_u32 vcc, {4*k}, v7")
        a(f"s_cbranch_execz L_ld_{tag}")
        a(f"buffer_load_dwordx4 {vr(REC+4*k,4)}, v8, s[16:19], 0 offen offset:{16*k}")
        if k == 2: a("s_mov_b32 s51, 1")
    a(f"L_ld_{tag}:\ns_mov_b64 exec, -1")

def gen_k2(opt):
    a = Asm()
    KN = "gather_scatter__edge_featured_mpnn_egc__graph_kernel"
    a(f".globl {KN}\n.p2align 8\n.type {KN},@function\n{KN}:")
    a("s_cmp_ge_u32 s2, 256\ns_cbranch_scc1 K2_end")
    stamp(a, opt, 0, 1)
    if opt.get("spin") == 2: a("s_memrealtime s[56:57]")
    a("s_load_dwordx4 s[4:7], s[0:1], 0       ; x, e_attr")
    a("s_load_dwordx2 s[24:25], s[0:1], 56    ; out")
    a("s_load_dwordx2 s[16:17], s[0:1], 72    ; ws")
    a("v_lshrrev_b32 v2, 6, v0\nv_and_b32 v1, 63, v0")
    a(f"v_readfirstlane_b32 s{sWV}, v2")
    a(f"s_and_b32 s3, s2, 7\ns_lshl_b32 s3, s3, 5\ns_lshr_b32 s{sB}, s2, 3\ns_or_b32 s{sB}, s{sB}, s3      ; bin")
    a(f"v_lshrrev_b32 v9, 1, v0                ; chunk")
    a(f"s_lshl_b32 s3, s{sB}, 2\nv_lshl_add_u32 v2, v9, 10, s3")
    a(f"s_lshl_b32 s31, s{sWV}, 2\nv_lshrrev_b32 v3, 4, v1\nv_add_u32 v3, s31, v3\nv_xor_b32 v3, v3, v1\nv_and_b32 v3, 7, v3\nv_lshlrev_b32 v3, 4, v3")
    a(f"v_lshrrev_b32 v4, 3, v0\nv_lshl_add_u32 v3, v4, 15, v3\ns_lshl_b32 s3, s{sB}, 7\nv_add_u32 v3, s3, v3")
    a("v_lshlrev_b32 v10, 4, v1                ; lane*16")
    a(f"s_lshl_b32 s47, s{sWV}, 10\ns_add_u32 m0, s47, {STG}")
    a("s_waitcnt lgkmcnt(0)")
    srd(a, 20, 16, NCH*1024, TAB_OFF)
    a("buffer_load_dword v2, v2, s[20:23], 0 offen")
    srd(a, 12, 6, NE*32)
    srd(a, 4, 4, N*128)
    a("buffer_load_dwordx4 v3, s[4:7], 0 offen lds")
    srd(a, 52, 16, 34*1024, FRAG_OFF)
    a("v_lshlrev_b32 v11, 4, v0")
    for j in range(5):
        a(f"s_add_u32 m0, s47, {WST + 8192*j}")
        if j: a("v_add_u32 v11, 8192, v11")
        else: a("s_nop 0")
        a("buffer_load_dwordx4 v11, s[52:55], 0 offen lds")
    a("s_sub_u32 s8, s4, 3072\ns_subb_u32 s9, s5, 0\ns_mov_b32 s10, 0\ns_mov_b32 s11, 0x20000")
    srd(a, 16, 16, NE*4)
    srd(a, 24, 24, N*128)
    a(f"s_mov_b32 s{sXSZ}, {0 if opt.get('nox') else N*128 + 3072}\ns_mov_b32 s{sESZ}, {0 if opt.get('noe') else NE*32}\ns_mov_b32 s{sMSK}, 0x3ff80\ns_mov_b32 s{sFC}, 0xfc")
    a(f"s_mov_b32 s{sMODE}, 0\ns_mov_b32 s{sRND}, 0\ns_mov_b32 s{sNR}, 1")
    a(f"s_mul_i32 s{sSTG}, s{sWV}, {WSTG}\ns_add_u32 s{sSTG}, s{sSTG}, {STG}")
    a("v_mov_b32 v11, 0\nv_lshlrev_b32 v12, 2, v1\nv_mov_b32 v13, 1")
    a(f"s_cmp_lg_u32 s{sWV}, 0\ns_cbranch_scc1 L_nz")
    a(f"ds_write_b32 v12, v11 offset:{CNT}\nds_write_b32 v12, v11 offset:{FLAG}")
    a("L_nz:")
    a("v_lshrrev_b32 v14, 5, v1                ; lane>>5")
    a("v_and_b32 v15, 31, v1                   ; m / n")
    a("v_and_b32 v4, 7, v1\nv_lshlrev_b32 v5, 2, v14\nv_xor_b32 v4, v4, v5\nv_lshlrev_b32 v4, 4, v4")
    for k in range(4): a(f"v_xor_b32 v5, {16*k}, v4\nv_add_u32 v{COL+k}, {3072 - 1024*k}, v5")
    a(f"v_and_b32 v4, 1, v1\nv_xor_b32 v4, v4, v14\nv_lshlrev_b32 v{EH}, 4, v4")
    a(f"v_bfe_u32 v4, v1, 4, 1\nv_lshlrev_b32 v4, 5, v4\nv_and_b32 v5, 3, v1\nv_lshl_add_u32 v{XAC}, v5, 3, v4")
    a(f"v_lshlrev_b32 v4, 3, v15\nv_add_u32 v{N8}, 0x80000000, v4")
    a("v_and_b32 v4, 3, v15\nv_lshlrev_b32 v4, 3, v4\nv_and_b32 v5, 4, v15\nv_or_b32 v4, v4, v5\nv_lshrrev_b32 v5, 3, v15\nv_or_b32 v4, v4, v5")
    a(f"v_lshlrev_b32 v4, 7, v4\nv_add_u32 v4, s{sSTG}, v4")
    a("v_and_b32 v5, 7, v15\nv_xor_b32 v5, v5, v14\nv_lshlrev_b32 v5, 4, v5")
    for s in range(4): a(f"v_xor_b32 v6, {32*s}, v5\nv_add_u32 v{AR+s}, v4, v6")
    a(f"v_lshrrev_b32 v4, 4, v15\nv_xor_b32 v4, v4, v14\nv_lshlrev_b32 v4, 4, v4\nv_lshl_add_u32 v4, v15, 5, v4\nv_add_u32 v4, s{sSTG}, v4\nv_add_u32 v{ER}, 4096, v4")
    a(f"v_bfe_u32 v4, v1, 3, 2\nv_lshlrev_b32 v4, 5, v4\nv_add_u32 v{CX}, {LIST}, v4")
    a(f"v_lshrrev_b32 v4, 4, v1\nv_lshlrev_b32 v4, 2, v4\nv_bfe_u32 v5, v1, 1, 2\nv_add_lshl_u32 v4, v4, v5, 3\nv_add_u32 v{CE}, {LIST}, v4")
    a(f"v_bfe_u32 v4, v1, 2, 2\nv_lshlrev_b32 v4, 2, v4\nv_add_u32 v{CQ}, {QI}, v4")
    a("v_bfe_u32 v4, v15, 2, 1\nv_cmp_eq_u32 vcc, v4, v14\nv_bfe_u32 v5, v15, 3, 1\nv_lshlrev_b32 v5, 4, v5\nv_mov_b32 v6, 0x3f80\nv_lshlrev_b32 v6, v5, v6")
    a("v_cndmask_b32 v6, 0, v6, vcc\nv_cmp_gt_u32 vcc, 16, v15\ns_nop 1")
    a(f"v_cndmask_b32 v{SEL}, 0, v6, vcc\nv_cndmask_b32 v{SEL+1}, v6, v11, vcc\nv_mov_b32 v{SEL+2}, 0\nv_mov_b32 v{SEL+3}, 0")
    for i in range(4): a(f"v_mov_b32 v{ONE+i}, 0x3e803e80")
    for t in range(2): a(f"v_mov_b32 v{XAB[t]+2}, 0\nv_mov_b32 v{XAB[t]+3}, 0")
    a(f"v_mul_u32_u24 v4, {CH}, v9")
    a("v_and_b32 v9, 1, v0")
    a("s_waitcnt vmcnt(6)")
    stamp(a, opt, 1, 1)
    a("v_lshrrev_b32 v3, 16, v2")
    a("v_and_b32 v5, 0xffff, v2\nv_add_u32 v5, v5, v4")
    a("v_add_u32 v6, 1, v3\nv_lshrrev_b32 v6, 1, v6\nv_cmp_eq_u32 vcc, 1, v9\nv_sub_u32 v7, v3, v6")
    a(f"s_nop 0\nv_cndmask_b32 v7, v6, v7, vcc\nv_cndmask_b32 v6, 0, v6, vcc\nv_min_u32 v7, {RMAX}, v7\nv_add_u32 v6, v6, v5")
    a("s_mov_b32 s51, 0")
    load_records(a, "f", RMAX // 4)
    a("s_cmp_eq_u32 s51, 1\ns_cbranch_scc1 L_w3\ns_waitcnt vmcnt(0)\nL_w3:\ns_waitcnt vmcnt(3) lgkmcnt(0)")
    a("s_barrier")
    a(f"v_cmp_lt_u32 vcc, {2*RMAX}, v3\ns_cbranch_vccz L_noflag")
    a(f"ds_write_b32 v11, v13 offset:{FLAG}")
    a("L_noflag:")
    a(f"s_and_b32 s46, s{sWV}, 1                ; M tile\ns_bfe_u32 s47, s{sWV}, 0x10001          ; N tile")
    a("v_lshrrev_b32 v8, 1, v15\nv_and_b32 v8, 7, v8\nv_xor_b32 v8, v8, v14\nv_lshlrev_b32 v8, 4, v8\nv_lshl_add_u32 v8, v15, 7, v8")
    a(f"s_lshl_b32 s48, s46, 12\ns_add_u32 s48, s48, {STG}")
    for s in range(4):
        a(f"v_xor_b32 v2, {32*s}, v8\nv_add_u32 v2, s48, v2\nds_read_b128 {vr(X+4*s,4)}, v2")
    D = 76
    a(f"s_lshr_b32 s48, s{sWV}, 1\ns_lshl_b32 s48, s48, 12\nv_add_u32 v2, s48, v10")
    for s in range(4):
        a(f"ds_read_b128 {vr(96+4*s,4)}, v2 offset:{WST + (18+s)*1024}")
    for i in range(7):
        a(f"ds_read_b128 {vr(WB+4*i,4)}, v10 offset:{WST + i*1024}")
    for s in range(4):
        a(f"s_waitcnt lgkmcnt({10-s})")
        a(mf(D, X+4*s, 96+4*s, '0' if s == 0 else D))
    for i in range(7, 18):
        a(f"ds_read_b128 {vr(WB+4*i,4)}, v10 offset:{WST + i*1024}")
    a(f"s_lshl_b32 s48, s46, 5\nv_lshl_add_u32 v2, v14, 2, s48")
    a(f"s_cmp_ge_u32 s{sWV}, 4\ns_cbranch_scc1 L_xu")
    a(f"s_lshl_b32 s48, s47, 6\ns_add_u32 s48, s48, {NODE + 512}\nv_mul_u32_u24 v2, {NS}, v2\nv_add_u32 v2, s48, v2\nv_lshl_add_u32 v2, v15, 1, v2")
    a(f"s_mov_b32 s48, {hex(f2u(-LOG2E))}\ns_nop 4")
    for i in range(4):
        if i == 2: a("s_cmp_eq_u32 s46, 0\ns_cselect_b32 exec_hi, -1, 0")
        if i == 3: a("s_cbranch_scc0 L_xdone")
        for j in range(4): a(f"v_mul_f32 v{D+4*i+j}, s48, v{D+4*i+j}")
        for j in (0, 2):
            a(f"v_cvt_pk_bf16_f32 v{D+4*i+j}, v{D+4*i+j}, v{D+4*i+j+1}")
            a(f"ds_write_b16 v2, v{D+4*i+j} offset:{(8*i+j)*NS}\nds_write_b16_d16_hi v2, v{D+4*i+j} offset:{(8*i+j+1)*NS}")
    a("s_branch L_xdone")
    a("L_xu:")
    a(f"s_lshl_b32 s48, s47, 8\ns_add_u32 s48, s48, {NODE}\nv_mul_u32_u24 v2, {NS}, v2\nv_add_u32 v2, s48, v2\nv_lshl_add_u32 v2, v15, 3, v2\ns_nop 5")
    for i in range(4):
        if i == 2: a("s_cmp_eq_u32 s46, 0\ns_cselect_b32 exec_hi, -1, 0")
        if i == 3: a("s_cbranch_scc0 L_xdone")
        for j in range(4):
            a(f"v_cvt_f64_f32 {vr(96+2*j,2)}, v{D+4*i+j}\nds_write_b64 v2, {vr(96+2*j,2)} offset:{(8*i+j)*NS}")
    a("L_xdone:\ns_mov_b64 exec, -1")
    a("s_waitcnt vmcnt(0)")
    stamp(a, opt, 2, 1)
    a("L_count:")
    for k in range(RMAX):
        a(f"v_cmpx_lt_u32 vcc, {k}, v7")
        if k >= 4 and k % 2 == 0: a("s_cbranch_execz L_cdone")
        a(f"v_and_b32_sdwa v{CA+k}, s{sFC}, v{REC+k} dst_sel:DWORD dst_unused:UNUSED_PAD src0_sel:DWORD src1_sel:BYTE_3")
        a(f"ds_add_rtn_u32 v{RANK+k}, v{CA+k}, v13 offset:{CNT}")
        a(f"v_bfe_u32 v{PAIR+2*k}, v{REC+k}, 12, 14\nv_and_b32 v8, 0xfff, v{REC+k}\nv_add_lshl_u32 v{PAIR+2*k+1}, v8, v4, 5")
    a("L_cdone:\ns_mov_b64 exec, -1")
    a("s_waitcnt lgkmcnt(0)\ns_barrier")
    stamp(a, opt, 3, 1)
    a(f"ds_read_b32 v16, v12 offset:{CNT}\nds_read_b32 v17, v11 offset:{FLAG}")
    a("s_waitcnt lgkmcnt(0)")
    a("v_add_u32 v18, 3, v16\nv_lshrrev_b32 v18, 2, v18\nv_mov_b32 v19, v18\nv_readfirstlane_b32 s46, v17")
    dpp_scan(a, 19)
    a("s_nop 0\nv_readlane_b32 s47, v19, 63             ; Q")
    a(f"v_sub_u32 v19, v19, v18\nv_lshlrev_b32 v20, 5, v19\nv_add_u32 v20, {LIST}, v20")
    a(f"ds_write_b32 v12, v20 offset:{BASES}")
    a(f"s_add_u32 s{sG}, s47, 7\ns_lshr_b32 s{sG}, s{sG}, 3")
    a(f"s_cmp_gt_u32 s{sG}, {CAPG}\ns_cselect_b32 s46, 1, s46\ns_andn2_b32 s46, s46, s{sMODE}\ns_cmp_lg_u32 s46, 0\ns_cbranch_scc1 L_fb_enter")
    for k in range(RMAX):
        a(f"v_cmpx_lt_u32 vcc, {k}, v7")
        if k >= 4 and k % 2 == 0: a("s_cbranch_execz L_bdone")
        a(f"ds_read_b32 v{CA+k}, v{CA+k} offset:{BASES}")
    a("L_bdone:\ns_mov_b64 exec, -1")
    a(f"v_mul_u32_u24 v21, {NS}, v1\nv_add_u32 v21, {NODE}, v21\nv_add_u32 v22, s{sWV}, v19\nv_lshlrev_b32 v22, 2, v22\nv_add_u32 v22, {QI}, v22")
    a(f"s_mov_b32 s46, s{sWV}\ns_cmp_eq_u32 s46, 0\ns_cselect_b32 s48, 0x80000000, 0\nv_or_b32 v23, s48, v21")
    a("L_qloop:")
    a("v_cmpx_lt_u32 vcc, s46, v18\ns_cbranch_execz L_qdone")
    a("ds_write_b32 v22, v23\nv_mov_b32 v23, v21\nv_add_u32 v22, 32, v22\ns_add_u32 s46, s46, 8\ns_branch L_qloop")
    a("L_qdone:\ns_mov_b64 exec, -1")
    a("v_mov_b32 v24, 0x3fff\nv_mov_b32 v25, 0x7fffffe0")
    a(f"s_cmp_gt_u32 s{sWV}, 2\ns_cbranch_scc1 L_pad3")
    a(f"v_add_u32 v26, s{sWV}, v16\nv_lshlrev_b32 v27, 2, v18\nv_cmpx_lt_u32 vcc, v26, v27\nv_lshl_add_u32 v26, v26, 3, v20\nds_write_b64 v26, v[24:25]")
    a("s_branch L_paddone")
    a("L_pad3:")
    a(f"s_lshl_b32 s46, s{sG}, 3\ns_sub_u32 s46, s46, s47")
    a(f"s_cmp_eq_u32 s{sWV}, 3\ns_cbranch_scc0 L_pad4")
    a(f"s_lshl_b32 s46, s46, 2\ns_lshl_b32 s48, s47, 5\ns_add_u32 s48, s48, {LIST}\nv_cmpx_gt_u32 vcc, s46, v1\nv_lshl_add_u32 v26, v1, 3, s48\nds_write_b64 v26, v[24:25]")
    a("s_branch L_paddone")
    a("L_pad4:")
    a(f"s_cmp_eq_u32 s{sWV}, 4\ns_cbranch_scc0 L_paddone")
    a(f"s_lshl_b32 s48, s47, 2\ns_add_u32 s48, s48, {QI}\nv_mov_b32 v27, {NODE}\nv_cmpx_gt_u32 vcc, s46, v1\nv_lshl_add_u32 v26, v1, 2, s48\nds_write_b32 v26, v27")
    a("L_paddone:\ns_mov_b64 exec, -1")
    alpha = opt.get("alpha", 32)
    a(f"s_and_b32 s31, s{sWV}, 3\ns_lshr_b32 s46, s{sG}, 2\ns_and_b32 s47, s{sG}, 3\ns_mul_i32 s48, s46, s31\ns_min_u32 s49, s47, s31\ns_add_u32 s48, s48, s49")
    a(f"s_cmp_lt_u32 s31, s47\ns_addc_u32 s46, s46, 0")
    a(f"s_mul_i32 s47, s46, {alpha}\ns_add_u32 s47, s47, 32\ns_lshr_b32 s47, s47, 6\ns_sub_u32 s46, s46, s47")
    a(f"s_cmp_lt_u32 s{sWV}, 4\ns_cselect_b32 s{sN}, s47, s46\ns_cselect_b32 s47, 0, s47\ns_add_u32 s48, s48, s47")
    if opt.get("prio"):
        a(f"s_cmp_lt_u32 s{sWV}, 4\ns_cbranch_scc0 L_noprio\ns_setprio 1\nL_noprio:")
    a(f"s_lshl_b32 s46, s{sN}, 7\ns_lshl_b32 s47, s48, 8")
    a(f"v_mad_u32_u24 v{LPX}, v14, s46, v{CX}\nv_add_u32 v{LPX}, s47, v{LPX}")
    a(f"v_bfe_u32 v26, v1, 3, 1\nv_mad_u32_u24 v{LPE}, v26, s46, v{CE}\nv_add_u32 v{LPE}, s47, v{LPE}")
    a(f"s_lshl_b32 s46, s{sN}, 4\ns_lshl_b32 s47, s48, 5")
    a(f"v_mad_u32_u24 v{QP}, v14, s46, v{CQ}\nv_add_u32 v{QP}, s47, v{QP}")
    a("s_waitcnt lgkmcnt(0)")
    for k in range(RMAX):
        a(f"v_cmpx_lt_u32 vcc, {k}, v7")
        if k >= 4 and k % 2 == 0: a("s_cbranch_execz L_pdone")
        a(f"v_lshl_add_u32 v{CA+k}, v{RANK+k}, 3, v{CA+k}\nds_write_b64 v{CA+k}, {vr(PAIR+2*k,2)}")
    a("L_pdone:\ns_mov_b64 exec, -1")
    a("s_waitcnt lgkmcnt(0)\ns_barrier")
    stamp(a, opt, 4, 1)
    a(f"s_cmp_eq_u32 s{sN}, 0\ns_cbranch_scc1 L_rend")
    a.ext(list_reads(0))
    a(f"ds_read_b32 v{W[0]}, v{QP}")
    a.ext(dma_enable(0))
    a("s_waitcnt lgkmcnt(1)")
    for b in dma_group(0, 0): a.ext(b)
    a.ext(list_reads(1))
    a.ext(dma_enable(1))
    a("s_waitcnt lgkmcnt(3)")
    a(f"v_and_or_b32 v{XAA}, v{W[0]}, s{sMSK}, v{XAC}\nv_cmp_gt_i32 s[{sF[0]}:{sF[0]+1}], 0, v{W[0]}")
    a(f"ds_read_b64_tr_b16 {vr(XAB[0],2)}, v{XAA} offset:512\nds_read_b64_tr_b16 {vr(XAB[1],2)}, v{XAA} offset:576")
    a(f"s_or_b32 s{sFO[0]}, s{sF[0]}, s{sF[0]+1}")
    a(f"v_mov_b32_dpp v{T2}, v{W[0]} row_newbcast:0 row_mask:0xf bank_mask:0xf")
    a(f"v_mov_b32 v{AC[0]}, 0\nv_mov_b32 v{AC[1]}, 0\nv_or_b32 v{T2}, 0x80000000, v{T2}")
    a(f"v_add_u32 v{CUR[0]}, v{T2}, v{N8}\nv_add_u32 v{CUR[1]}, v{T2}, v{N8}")
    a(f"s_waitcnt vmcnt({opt.get('g1wait', 1)}) lgkmcnt(2)")
    for b in dma_group(1, 1): a.ext(b)
    a("s_waitcnt vmcnt(5)")
    stamp(a, opt, 5, 1)
    a(f"ds_read_b128 {vr(E,4)}, v{ER}")
    for s in range(4): a(f"ds_read_b128 {vr(X+4*s,4)}, v{AR+s}")
    g0 = gate_chain(0)
    a("s_waitcnt lgkmcnt(4)")
    a(g0[0]); a(g0[1])
    for s in range(4):
        a(f"s_waitcnt lgkmcnt({3-s})"); a(g0[2+s])
    a("s_nop 7\ns_nop 3")
    stubs = []
    s0f = slot0(0, True, stubs)
    s0 = [slot0(0, False, stubs), slot0(1, False, stubs)]
    s1 = [slot1(0, stubs), slot1(1, stubs)]
    dec = [f"s_sub_u32 s{sN}, s{sN}, 1", f"s_cmp_eq_u32 s{sN}, 0"]
    inc = [f"v_add_u32 v{LPX}, 256, v{LPX}", f"v_add_u32 v{LPE}, 256, v{LPE}", f"v_add_u32 v{QP}, 32, v{QP}"]
    dr = [bpart(1, 0, "d0", stubs), bpart(1, 1, "d1", stubs)]
    a.ext(s0f)
    a("s_branch L_s1_u0")
    a(".p2align 6\nL_u0:")
    a.ext(s0[0])
    a("L_s1_u0:")
    a.ext(s1[0]); a.ext(dec); a("s_cbranch_scc1 L_drain0")
    a.ext(s0[1]); a.ext(s1[1]); a.ext(inc); a.ext(dec); a("s_cbranch_scc0 L_u0")
    a.ext(dr[1]); a("s_branch L_flush")
    a("L_drain0:"); a.ext(dr[0])
    a("L_flush:")
    a(f"v_cvt_f64_f32 {vr(TMP,2)}, v{AC[0]}\nv_cvt_f64_f32 {vr(XW,2)}, v{AC[1]}")
    a(f"ds_add_f64 v{CUR[0]}, {vr(TMP,2)}\nds_add_f64 v{CUR[1]}, {vr(XW,2)} offset:256")
    bad = check(g0 + ["s_nop 7", "s_nop 3"] + s0f + ["s_branch x"] + s1[0] + dec + ["s_cbranch x"] + s0[1] + s1[1] + inc + dec + ["s_cbranch x"] + s0[0] + s1[0] + dec + ["s_cbranch x"] + dr[0], "loop")
    bad += check(s1[1] + inc + dec + ["s_cbranch x"] + dr[1], "drain1")
    assert bad == 0
    a("L_rend:")
    a("s_waitcnt vmcnt(0) lgkmcnt(0)")
    stamp(a, opt, 6, 1)
    a("s_barrier")
    a(f"s_add_u32 s{sRND}, s{sRND}, 1\ns_cmp_lt_u32 s{sRND}, s{sNR}\ns_cbranch_scc1 L_fb_round")
    a(f"s_cmp_eq_u32 s{sWV}, 7\ns_cbranch_scc1 L_fin")
    a(f"s_mul_i32 s46, s{sWV}, {8*NS}\ns_add_u32 s46, s46, {NODE}\nv_mul_u32_u24 v2, {NS}, v14\nv_lshl_add_u32 v2, v15, 4, v2\nv_add_u32 v2, s46, v2")
    for q in range(4): a(f"ds_read_b128 {vr(16+4*q,4)}, v2 offset:{2*NS*q}")
    a(f"s_lshl_b32 s46, s{sWV}, 18\ns_lshl_b32 s47, s{sB}, 7\ns_add_u32 s46, s46, s47\nv_lshlrev_b32 v3, 15, v14\nv_lshl_add_u32 v3, v15, 2, v3\nv_add_u32 v3, s46, v3")
    a(f"s_mov_b32 s46, {hex(f2u(-LOG2E))}\nv_add_u32 v4, 0x10000, v3\nv_add_u32 v5, 0x20000, v3\nv_add_u32 v6, 0x30000, v3")
    for q in range(4):
        a(f"s_waitcnt lgkmcnt({3-q})")
        z = 32 + 2*q; t = 40 + 2*q
        a(f"v_cvt_f32_f64 v{z}, {vr(16+4*q,2)}\nv_cvt_f32_f64 v{z+1}, {vr(18+4*q,2)}")
        a(f"v_mul_f32 v{t}, s46, v{z}\nv_mul_f32 v{t+1}, s46, v{z+1}")
        a(f"v_exp_f32 v{t}, v{t}\nv_exp_f32 v{t+1}, v{t+1}\ns_nop 0")
        a(f"v_add_f32 v{t}, 1.0, v{t}\nv_add_f32 v{t+1}, 1.0, v{t+1}")
        a(f"v_rcp_f32 v{t}, v{t}\nv_rcp_f32 v{t+1}, v{t+1}\ns_nop 0")
        a(f"v_mul_f32 v{t}, v{z}, v{t}\nv_mul_f32 v{t+1}, v{z+1}, v{t+1}")
        a(f"v_cvt_pk_bf16_f32 v{t}, v{t}, v{t+1}")
        a(f"buffer_store_dword v{t}, v{3+q}, s[24:27], 0 offen")
    a("L_fin:")
    if opt.get("spin"):
        a("s_or_b32 s3, s2, s28\ns_cmp_lg_u32 s3, 0\ns_cbranch_scc1 K2_end")
        if opt.get("spin") == 1:
            a("s_mov_b32 s18, 0x1000000\nv_mov_b32 v5, 0x800000\nbuffer_load_dword v4, v5, s[16:19], 0 offen\ns_waitcnt vmcnt(0)\nv_readfirstlane_b32 s56, v4")
        a("s_mov_b32 s47, 200000\nL_spin:\ns_memrealtime s[48:49]\ns_waitcnt lgkmcnt(0)\ns_sub_u32 s48, s48, s56\ns_cmp_ge_u32 s48, 6000\ns_cbranch_scc1 K2_end\ns_sub_u32 s47, s47, 1\ns_cmp_lg_u32 s47, 0\ns_cbranch_scc1 L_spin")
    if opt.get("ts"):
        a("s_waitcnt vmcnt(0)")
        stamp(a, opt, 7, 1)
        stamp_store(a, opt, 8 if opt.get("ts") == 2 else 10, 1, 16, sWV, 8)
    a("s_endpgm")
    for st in stubs: a.ext(stub(*st))
    a("L_fb_enter:")
    a(f"ds_max_u32 v11, v3 offset:{MAXL}\ns_mov_b32 s{sMODE}, 1\ns_waitcnt lgkmcnt(0)\ns_barrier")
    a(f"ds_read_b32 v16, v11 offset:{MAXL}\ns_waitcnt lgkmcnt(0)\nv_readfirstlane_b32 s46, v16")
    a(f"s_add_u32 s46, s46, {2*FBJ-1}\ns_mul_i32 s46, s46, {(65536 + 2*FBJ - 1)//(2*FBJ)}\ns_lshr_b32 s{sNR}, s46, 16")
    a("L_fb_round:")
    a(f"s_cmp_lg_u32 s{sWV}, 0\ns_cbranch_scc1 L_fb_nz\nds_write_b32 v12, v11 offset:{CNT}\nL_fb_nz:")
    a(f"s_mul_i32 s46, s{sRND}, {2*FBJ}\nv_mul_u32_u24 v6, {FBJ}, v9\nv_add_u32 v6, s46, v6\nv_sub_u32 v7, v3, v6\nv_max_i32 v7, 0, v7\nv_min_u32 v7, {FBJ}, v7\nv_add_u32 v6, v6, v5")
    load_records(a, "r", (FBJ + 3) // 4)
    a("s_waitcnt vmcnt(0) lgkmcnt(0)\ns_barrier\ns_branch L_count")
    a("K2_end:\ns_endpgm")
    return a.L

def desc(name, vg, sg):
    return f""".amdhsa_kernel {name}
  .amdhsa_next_free_vgpr {vg}
  .amdhsa_next_free_sgpr {sg}
  .amdhsa_accum_offset {(vg+3)//4*4}
  .amdhsa_group_segment_fixed_size 0
  .amdhsa_kernarg_size 80
  .amdhsa_user_sgpr_count 2
  .amdhsa_user_sgpr_kernarg_segment_ptr 1
  .amdhsa_system_sgpr_workgroup_id_x 1
  .amdhsa_float_denorm_mode_32 3
.end_amdhsa_kernel"""

def gen(opt):
    OPT.clear(); OPT.update(opt)
    KN = "gather_scatter__edge_featured_mpnn_egc__graph_kernel"
    hdr = open("gather_scatter__edge_featured_mpnn_egc__graph.s.ref").read().split("\n")
    hdr = [l for l in hdr if l.startswith(";") and "@launch" not in l and "Override launch" not in l and "grid=ceil" not in l]
    out = hdr + [f"; @launch kernel=bin_kernel grid=({NCH+3},1,1) block=(832,1,1) lds={K1_LDS}",
                 f"; @launch kernel={KN} grid=(256,1,1) block=(512,1,1) lds={K2_LDS}",
                 '.amdgcn_target "amdgcn-amd-amdhsa--gfx950"', ".text"]
    k1 = gen_k1(opt); k2 = gen_k2(opt)
    check(k1, "k1-linear"); check(k2, "k2-linear")
    fmt = lambda L: [l if (l.endswith(":") or l.startswith(".")) else "    " + l for l in L]
    out += fmt(k1) + fmt(k2)
    out += ['.section .rodata,"a"', ".p2align 6", desc("bin_kernel", 56, 102 if opt.get("ts") else 40), ".p2align 6", desc(KN, 256, 102 if opt.get("ts") else 64)]
    return "\n".join(out) + "\n"

if __name__ == "__main__":
    opt = {}
    outp = sys.argv[1]
    for kv in sys.argv[2:]:
        k, v = kv.split("="); opt[k] = int(v)
    open(outp, "w").write(gen(opt))
```
